```python
import torch

def _softmax(x, axis=-1):
    return torch.softmax(x, dim=axis)
def _gelu(x):
    return torch.nn.functional.gelu(x, approximate="tanh")
def _silu(x):
    return torch.nn.functional.silu(x)
def _sigmoid(x):
    return torch.sigmoid(x)
def _layernorm(x, axis=-1, eps=1e-5):
    m = x.mean(dim=axis, keepdim=True)
    v = x.var(dim=axis, keepdim=True, unbiased=False)
    return (x - m) / torch.sqrt(v + eps)
def _scatter_add(tgt, idx, src, axis=0):
    return tgt.clone().index_add_(axis, idx, src)
def _segment_sum(src, seg, n):
    out = torch.zeros((n,) + src.shape[1:], dtype=src.dtype)
    return out.index_add_(0, seg, src)
def _pad(x, pw):
    flat = tuple(v for pair in reversed(pw) for v in pair)
    return torch.nn.functional.pad(x, flat)

kernel_name = 'parallel_sum__grouped_kv_mqa__dense_activation_silu__prompt'

def setup_inputs():

    _w = (lambda a: (lambda t: t.to(torch.bfloat16) if t.is_floating_point() else t)(torch.as_tensor(a)))
    def _A_setup():
        B, S, D, H = 1, 2048, 640, 32
        Dh = D // H
        return {
            "x": _w((lambda *s: torch.randn(*s, dtype=torch.bfloat16) * 0.05)(B, S, D)),
            "wq": _w((lambda *s: torch.randn(*s, dtype=torch.bfloat16) * 0.05)(D, H * Dh)),
            "wk": _w((lambda *s: torch.randn(*s, dtype=torch.bfloat16) * 0.05)(D, Dh)),
            "wv": _w((lambda *s: torch.randn(*s, dtype=torch.bfloat16) * 0.05)(D, Dh)),
            "wo": _w((lambda *s: torch.randn(*s, dtype=torch.bfloat16) * 0.05)(H * Dh, D)),
        }
    _A_in = _A_setup()

    def _B_setup():
        B, S, D, F = 1, 2048, 640, 1536
        return {
            "x": _w((lambda *s: torch.randn(*s, dtype=torch.bfloat16) * 0.05)(B, S, D)),
            "w1": _w((lambda *s: torch.randn(*s, dtype=torch.bfloat16) * 0.8)(D, F) * (D ** -0.5)),
            "w2": _w((lambda *s: torch.randn(*s, dtype=torch.bfloat16) * 0.8)(F, D) * (F ** -0.5)),
        }
    _B_in = _B_setup()

    return {
        "A_x": _A_in["x"],
        "A_wq": _A_in["wq"],
        "A_wk": _A_in["wk"],
        "A_wv": _A_in["wv"],
        "A_wo": _A_in["wo"],
        "B_x": _B_in["x"],
        "B_w1": _B_in["w1"],
        "B_w2": _B_in["w2"],
    }

def reference(A_x, A_wq, A_wk, A_wv, A_wo, B_x, B_w1, B_w2):
    def _A_ref(x, wq, wk, wv, wo):
        B, S, D = x.shape
        H = 32
        Dh = D // H
        q = (lambda x, *d: x.permute(*d))((x @ wq).reshape(B, S, H, Dh), 0, 2, 1, 3)
        k = x @ wk
        v = x @ wv
        scores = torch.einsum("bhqd,bkd->bhqk", q, k) * (Dh ** -0.5)
        p = _softmax(scores, axis=-1)
        o = torch.einsum("bhqk,bkd->bhqd", p, v)
        return (lambda x, *d: x.permute(*d))(o, 0, 2, 1, 3).reshape(B, S, H * Dh) @ wo

    def _B_ref(x, w1, w2):
        h = torch.einsum("bsd,df->bsf", x, w1)
        h = _silu(h)
        out = torch.einsum("bsf,fd->bsd", h, w2)
        return out

    x = A_x
    xn = _layernorm(x, axis=-1)
    return x + _A_ref(xn, A_wq, A_wk, A_wv, A_wo) + _B_ref(xn, B_w1, B_w2)
```

```python
class Asm:
    def __init__(self):
        self.lines = []
    def __call__(self, s):
        for ln in s.split("\n"):
            ln = ln.rstrip()
            if not ln.strip():
                continue
            if ln.strip().endswith(":") or ln.startswith("."):
                self.lines.append(ln.strip())
            else:
                self.lines.append("    " + ln.strip())
    def label(self, name):
        self.lines.append(name + ":")
    def comment(self, s):
        self.lines.append("    ; " + s)
    def text(self):
        return "\n".join(self.lines) + "\n"

def vr(a, n=1):
    return f"v{a}" if n == 1 else f"v[{a}:{a+n-1}]"
def sr(a, n=1):
    return f"s{a}" if n == 1 else f"s[{a}:{a+n-1}]"

def kernel_head(a, name):
    a.lines.append(".text")
    a.lines.append(f".globl {name}")
    a.lines.append(".p2align 8")
    a.lines.append(f".type {name},@function")
    a.lines.append(f"{name}:")

def kernel_desc(name, nvgpr, nsgpr=102, accum=None):
    acc = accum if accum is not None else min(256, (nvgpr + 3) // 4 * 4)
    return f""".amdhsa_kernel {name}
  .amdhsa_next_free_vgpr {nvgpr}
  .amdhsa_next_free_sgpr {nsgpr}
  .amdhsa_accum_offset {acc}
  .amdhsa_group_segment_fixed_size 0
  .amdhsa_kernarg_size 88
  .amdhsa_user_sgpr_count 2
  .amdhsa_user_sgpr_kernarg_segment_ptr 1
  .amdhsa_system_sgpr_workgroup_id_x 1
  .amdhsa_float_denorm_mode_32 3
  .amdhsa_float_denorm_mode_16_64 3
.end_amdhsa_kernel
"""

def srd(a, s, ptr, nbytes, off=0):
    if off:
        a(f"s_add_u32 s{s}, s{ptr}, {off}")
        a(f"s_addc_u32 s{s+1}, s{ptr+1}, 0")
    else:
        a(f"s_mov_b32 s{s}, s{ptr}")
        a(f"s_mov_b32 s{s+1}, s{ptr+1}")
    a(f"s_mov_b32 s{s+2}, {nbytes}")
    a(f"s_mov_b32 s{s+3}, 0x00020000")
```

```python
from asmlib import *
from layout import *

Q1, Q2 = 4, 8
A_V, A_KA, A_KB = 10, 11, 12
G_V, G_KA, G_KB = 13, 14, 15
CM = 16
SB = [32, 48]
O = 64
P = 80
GB = [dict(vb=88, va=92, ka=96, kb=100), dict(vb=104, va=108, ka=112, kb=116)]
K0A, K0B = 120, 124
NV = 128
U = 8
NLOAD = 4

def tile_body(a, t_par, first, reads, pre=None):
    g = GB[t_par]; gn = GB[t_par ^ 1]
    s = SB[t_par]; sn = SB[t_par ^ 1]
    def e(i): a(f"v_exp_f32 v{s+i}, v{s+i}")
    def c(i): a(f"v_cvt_pk_bf16_f32 v{P+i}, v{s+2*i}, v{s+2*i+1}")
    def rd(which):
        if reads is None: return
        if which == "ka": a(f"ds_read_b128 {vr(gn['ka'],4)}, v{A_KA} offset:{reads}")
        if which == "kb": a(f"ds_read_b64 {vr(gn['kb'],2)}, v{A_KB} offset:{reads}")
        if which == "vb": a(f"ds_read_b128 {vr(gn['vb'],4)}, v{A_V} offset:{reads}")
        if which == "va": a(f"ds_read_b128 {vr(gn['va'],4)}, v{A_V} offset:{reads+R_VA}")
    a("s_waitcnt lgkmcnt(0)")
    if pre: pre()
    a(f"v_mfma_f32_32x32x16_bf16 {vr(sn,16)}, {vr(g['ka'],4)}, {vr(Q1,4)}, {vr(CM,16)}")
    rd("ka"); e(0); e(1); e(2); c(0); e(3)
    if not first:
        a(f"v_mfma_f32_32x32x16_bf16 {vr(O,16)}, {vr(g['vb'],4)}, {vr(P+4,4)}, {vr(O,16)}")
    rd("kb"); e(4); c(1); e(5); e(6); c(2); e(7)
    a(f"v_mfma_f32_32x32x8_bf16 {vr(sn,16)}, {vr(g['kb'],2)}, {vr(Q2,2)}, {vr(sn,16)}")
    rd("vb"); e(8); c(3); e(9); e(10); c(4); e(11)
    a(f"v_mfma_f32_32x32x16_bf16 {vr(O,16)}, {vr(g['va'],4)}, {vr(P,4)}, {'0' if first else vr(O,16)}")
    rd("va"); e(12); c(5); e(13); e(14); e(15); c(6); c(7)

def gen_attn(a, name, prof=False):
    kernel_head(a, name)
    if prof:
        a('s_memtime s[96:97]')
        a('s_memrealtime s[100:101]')
    lo, hi = pack_bytes(PV_BASE)
    a(f"""
    s_cmp_ge_u32 s2, 256
    s_cbranch_scc1 L_at_end
    s_load_dwordx2 s[4:5], s[0:1], {KA_WS}
    v_and_b32 v1, 63, v0                    ; lane
    v_lshrrev_b32 v2, 6, v0
    v_lshlrev_b32 v127, 4, v1               ; lane*16
    v_readfirstlane_b32 s6, v2
    v_and_b32 v2, 31, v1                    ; l&31
    v_lshrrev_b32 v3, 5, v1                 ; half
    v_add_u32 v{G_KA}, {R_KA}, v127
    v_lshlrev_b32 v{G_KB}, 3, v2
    v_add_u32 v{G_KB}, {R_KB}, v{G_KB}
    v_lshlrev_b32 v126, 4, v2               ; (l&31)*16
    s_mul_i32 s7, s2, 10240
    s_lshl_b32 s12, s6, 10
    s_add_u32 s12, s12, s7
    s_lshr_b32 s13, s6, 1
    s_and_b32 s13, s13, 1
    s_lshl_b32 s13, s13, 10
    s_lshr_b32 s14, s6, 2
    s_lshl_b32 s14, s14, 9
    s_add_u32 s13, s13, s14
    s_and_b32 s14, s6, 1
    s_lshl_b32 s14, s14, 3
    s_add_u32 s13, s13, s14
    s_add_u32 s13, s13, s7
    s_add_u32 s13, s13, 8192
    s_waitcnt lgkmcnt(0)
    """)
    srd(a, 8, 4, WS_SIZE)
    a(f"""
    s_cmp_ge_u32 s6, 8
    s_cbranch_scc1 L_at_loader
    s_setprio 3
    buffer_load_dwordx4 {vr(Q1,4)}, v127, s[8:11], s12 offen
    buffer_load_dwordx2 {vr(Q2,2)}, v126, s[8:11], s13 offen
    s_add_u32 s16, s4, {WS_KMAX}
    s_addc_u32 s17, s5, 0
    s_load_dwordx16 s[32:47], s[16:17], 0
    s_load_dwordx16 s[48:63], s[16:17], 64
    s_load_dwordx16 s[64:79], s[16:17], 128
    s_load_dwordx16 s[80:95], s[16:17], 192
    v_lshrrev_b32 v{G_V}, 2, v2
    v_or_b32 v{G_V}, 0x0c0c0c00, v{G_V}
    v_mov_b32 v16, {lo:#x}
    v_mov_b32 v17, {hi:#x}
    v_perm_b32 v{G_V}, v17, v16, v{G_V}
    v_and_b32 v16, 3, v1
    v_mul_u32_u24 v17, 21, v3
    v_add3_u32 v{G_V}, v{G_V}, v16, v17
    v_lshlrev_b32 v{G_V}, 4, v{G_V}
    s_mov_b32 s18, 0
    """)
    a.label("L_at_restart")
    a(f"""
    s_mov_b32 s19, {WS_KV}
    s_mov_b32 s20, {WS_KV + REC}
    s_mov_b32 s21, {WS_KV + 2*REC}
    buffer_load_dwordx4 {vr(K0A,4)}, v{G_KA}, s[8:11], s19 offen
    buffer_load_dwordx2 {vr(K0B,2)}, v{G_KB}, s[8:11], s19 offen
    buffer_load_dwordx4 {vr(GB[0]['ka'],4)}, v{G_KA}, s[8:11], s20 offen
    buffer_load_dwordx2 {vr(GB[0]['kb'],2)}, v{G_KB}, s[8:11], s20 offen
    buffer_load_dwordx4 {vr(GB[0]['va'],4)}, v{G_V}, s[8:11], s20 offen offset:{R_VA}
    buffer_load_dwordx4 {vr(GB[1]['ka'],4)}, v{G_KA}, s[8:11], s21 offen
    buffer_load_dwordx2 {vr(GB[1]['kb'],2)}, v{G_KB}, s[8:11], s21 offen
    buffer_load_dwordx4 {vr(GB[1]['va'],4)}, v{G_V}, s[8:11], s21 offen offset:{R_VA}
    buffer_load_dwordx4 {vr(GB[1]['vb'],4)}, v{G_V}, s[8:11], s21 offen
    v_mov_b32 v{A_V}, v{G_V}
    v_mov_b32 v{A_KA}, v{G_KA}
    v_mov_b32 v{A_KB}, v{G_KB}
    s_cmp_lg_u32 s18, 0
    s_cbranch_scc1 L_at_go
    """)
    a("s_waitcnt lgkmcnt(0)")
    for i in range(33, 96):
        a(f"s_max_u32 s32, s32, s{i}")
    a(f"""
    s_waitcnt vmcnt(9)
    s_mov_b32 exec_lo, 0
    v_mov_b32 v{Q2}, 0
    v_mov_b32 v{Q2+1}, 0
    s_mov_b64 exec, -1
    v_mov_b32 v2, 0
    v_dot2c_f32_bf16 v2, v{Q1}, v{Q1}
    v_dot2c_f32_bf16 v2, v{Q1+1}, v{Q1+1}
    v_dot2c_f32_bf16 v2, v{Q1+2}, v{Q1+2}
    v_dot2c_f32_bf16 v2, v{Q1+3}, v{Q1+3}
    v_dot2c_f32_bf16 v2, v{Q2}, v{Q2}
    v_dot2c_f32_bf16 v2, v{Q2+1}, v{Q2+1}
    s_nop 2
    v_mov_b32 v3, v2
    s_nop 1
    v_permlane32_swap_b32 v3, v2
    s_nop 1
    v_add_f32 v2, v2, v3
    v_mul_f32 v2, s32, v2
    v_sqrt_f32 v2, v2
    s_nop 0
    v_sub_f32 v{CM}, 0, v2
    """)
    for i in range(1, 16):
        a(f"v_mov_b32 v{CM+i}, v{CM}")
    a.label("L_at_go")
    if prof:
        a('s_memtime s[98:99]')
        a('s_waitcnt lgkmcnt(0)')
    a(f"""
    s_waitcnt vmcnt(7)
    s_nop 0
    v_mfma_f32_32x32x16_bf16 {vr(SB[0],16)}, {vr(K0A,4)}, {vr(Q1,4)}, {vr(CM,16)}
    v_mfma_f32_32x32x8_bf16 {vr(SB[0],16)}, {vr(K0B,2)}, {vr(Q2,2)}, {vr(SB[0],16)}
    s_nop 10
    s_waitcnt vmcnt(4)
    """)
    def barrier(lbl, extra=""):
        def f():
            a(f"""
            {extra}
            s_cmp_lg_u32 s18, 0
            s_cbranch_scc1 {lbl}
            s_barrier
            """)
            a.label(lbl)
        return f
    for t in range(U):
        pre = None
        if t == 1: pre = barrier("L_at_b1", "s_waitcnt vmcnt(0)")
        if t == 4: pre = barrier("L_at_b2")
        tile_body(a, t & 1, t == 0, None if t == 0 else (t - 1) * REC, pre)
    a(f"""
    v_add_u32 v{A_V}, {(U-1)*REC}, v{A_V}
    v_add_u32 v{A_KA}, {(U-1)*REC}, v{A_KA}
    v_add_u32 v{A_KB}, {(U-1)*REC}, v{A_KB}
    s_mov_b32 s24, 1
    """)
    a.lines.append(".p2align 6")
    a.label("L_at_loop")
    for u in range(U):
        tile_body(a, u & 1, False, u * REC)
    a(f"""
    v_add_u32 v{A_V}, {U*REC}, v{A_V}
    v_add_u32 v{A_KA}, {U*REC}, v{A_KA}
    v_add_u32 v{A_KB}, {U*REC}, v{A_KB}
    s_add_u32 s24, s24, 1
    s_add_u32 s25, s24, s18
    s_cmp_lg_u32 s25, 2
    s_cbranch_scc1 L_at_b3
    s_barrier
    """)
    a.label("L_at_b3")
    a(f"""
    s_cmp_lg_u32 s24, 5
    s_cbranch_scc1 L_at_p1
    s_setprio 2
    """)
    a.label("L_at_p1")
    a(f"""
    s_cmp_lg_u32 s24, 7
    s_cbranch_scc1 L_at_p2
    s_setprio 1
    """)
    a.label("L_at_p2")
    a(f"""
    s_cmp_lt_u32 s24, {64//U}
    s_cbranch_scc1 L_at_loop
    s_waitcnt lgkmcnt(0)
    v_mfma_f32_32x32x16_bf16 {vr(O,16)}, {vr(GB[0]['vb'],4)}, {vr(P+4,4)}, {vr(O,16)}
    s_mov_b32 s26, 0x12800000               ; 2^-90
    ; O' addresses: main piece (tt*136 + head) KB, leftover (tt*136 + 32 + head/4) KB + (head%4)*4
    s_lshr_b32 s12, s2, 2
    s_mul_i32 s12, s12, {NKS}
    s_and_b32 s13, s2, 3
    s_lshl_b32 s13, s13, 3
    s_add_u32 s13, s13, s6                  ; head
    s_add_u32 s14, s12, s13
    s_lshl_b32 s14, s14, 10
    s_add_u32 s14, s14, {WS_AH}
    s_lshr_b32 s15, s13, 2
    s_add_u32 s15, s15, s12
    s_lshl_b32 s15, s15, 10
    s_and_b32 s13, s13, 3
    s_lshl_b32 s13, s13, 2
    s_add_u32 s15, s15, s13
    s_add_u32 s15, s15, {WS_AH + 32*1024}
    v_cmp_nle_f32 vcc, s26, v{O+SUMREG}     ; !(thr <= l)
    s_cmp_lg_u32 s18, 0
    s_cbranch_scc1 L_at_fin
    s_cbranch_vccnz L_at_fallback
    """)
    a.label("L_at_fin")
    if prof:
        a(f'''
        s_memtime s[32:33]
        s_memrealtime s[34:35]
        s_load_dwordx2 s[36:37], s[0:1], {KA_BX}
        s_waitcnt lgkmcnt(0)
        s_sub_u32 s33, s32, s98
        s_sub_u32 s32, s98, s96
        s_sub_u32 s34, s34, s100
        s_lshl_b32 s35, s2, 3
        s_add_u32 s35, s35, s6
        s_lshl_b32 s35, s35, 4
        v_mov_b32 v2, s35
        v_mov_b32 v88, s32
        v_mov_b32 v89, s33
        v_mov_b32 v90, s34
        v_mov_b32 v91, s100
        global_store_dwordx4 v2, v[88:91], s[36:37]
        s_nop 1
        ''')
    a(f"v_rcp_f32 v2, v{O+SUMREG}")
    a("s_nop 0")
    for i in range(10):
        a(f"v_mul_f32 v{O+i}, v{O+i}, v2")
    for i in range(5):
        a(f"v_cvt_pk_bf16_f32 v{P+i}, v{O+2*i}, v{O+2*i+1}")
    a(f"""
    buffer_store_dwordx4 {vr(P,4)}, v127, s[8:11], s14 offen
    buffer_store_dword v{P+4}, v127, s[8:11], s15 offen
    """)
    a.label("L_at_end")
    a("s_endpgm")
    a.label("L_at_loader")
    a(f"""
    s_sub_u32 s22, s6, 8
    s_lshl_b32 s22, s22, 10
    s_add_u32 s23, s22, {WS_KV + 3*REC}
    """)
    n = 160 // NLOAD
    step = 1024 * NLOAD
    for i in range(n):
        a(f"s_mov_b32 m0, s22")
        a(f"s_add_u32 s22, s22, {step}")
        a(f"buffer_load_dwordx4 v127, s[8:11], s23 offen lds")
        a(f"s_add_u32 s23, s23, {step}")
        if i == 9:
            a(f"s_waitcnt vmcnt({10 - 8192 // step})")
            a("s_barrier")
    a(f"""
    s_waitcnt vmcnt({n - 40960 // step})
    s_barrier
    s_waitcnt vmcnt(0)
    s_barrier
    s_endpgm
    """)
    a.label("L_at_fallback")
    a(f"""
    s_mov_b32 s18, 16
    s_mov_b32 s19, {WS_KV}
    s_mov_b32 s24, 0
    v_mov_b32 v2, 0xff800000
    """)
    a.label("L_at_fb_loop")
    a(f"""
    buffer_load_dwordx4 {vr(K0A,4)}, v{G_KA}, s[8:11], s19 offen
    buffer_load_dwordx2 {vr(K0B,2)}, v{G_KB}, s[8:11], s19 offen
    s_waitcnt vmcnt(0)
    v_mfma_f32_32x32x16_bf16 {vr(SB[0],16)}, {vr(K0A,4)}, {vr(Q1,4)}, 0
    v_mfma_f32_32x32x8_bf16 {vr(SB[0],16)}, {vr(K0B,2)}, {vr(Q2,2)}, {vr(SB[0],16)}
    s_nop 15
    """)
    for i in range(0, 16, 2):
        a(f"v_max3_f32 v2, v{SB[0]+i}, v{SB[0]+i+1}, v2")
    a(f"""
    s_add_u32 s19, s19, {REC}
    s_add_u32 s24, s24, 1
    s_cmp_lt_u32 s24, 64
    s_cbranch_scc1 L_at_fb_loop
    v_mov_b32 v3, v2
    s_nop 1
    v_permlane32_swap_b32 v3, v2
    s_nop 1
    v_max_f32 v2, v2, v3
    v_sub_f32 v{CM}, 0, v2
    """)
    for i in range(1, 16):
        a(f"v_mov_b32 v{CM+i}, v{CM}")
    a("s_branch L_at_restart")
    return kernel_desc(name, NV)
```

```python
from asmlib import *
from layout import *

ACC = 16
FB = 96
L16 = 2

def gen_post(a, name, ks0, nks_wave, depth=6):
    NV = FB + 24 * depth
    kernel_head(a, name)
    a(f"""
    s_cmp_ge_u32 s2, 256
    s_cbranch_scc1 L_po_end
    s_load_dwordx2 s[4:5], s[0:1], {KA_WS}
    s_load_dwordx2 s[16:17], s[0:1], {KA_X}
    s_load_dwordx2 s[18:19], s[0:1], {KA_OUT}
    v_and_b32 v1, 63, v0
    v_lshrrev_b32 v3, 6, v0
    v_lshlrev_b32 v{L16}, 4, v1
    v_readfirstlane_b32 s6, v3              ; wave
    s_lshr_b32 s20, s2, 2                   ; tt
    s_and_b32 s21, s2, 3                    ; cg
    s_mul_i32 s22, s6, {nks_wave}
    s_add_u32 s22, s22, {ks0}
    s_mul_i32 s23, s20, {NKS}
    s_add_u32 s23, s23, s22
    s_lshl_b32 s23, s23, 10
    s_add_u32 s23, s23, {WS_AH}             ; A' offset
    s_mul_i32 s24, s21, {NKS}
    s_add_u32 s24, s24, s22
    s_mul_i32 s24, s24, 5120
    s_add_u32 s24, s24, {WS_W}              ; W' offset
    s_waitcnt lgkmcnt(0)
    """)
    srd(a, 8, 4, WS_SIZE)
    def load(i):
        b = FB + 24 * (i % depth)
        a(f"buffer_load_dwordx4 {vr(b,4)}, v{L16}, s[8:11], s23 offen")
        for ct in range(4):
            a(f"buffer_load_dwordx4 {vr(b+4+4*ct,4)}, v{L16}, s[8:11], s24 offen offset:{ct*1024}")
        a("s_add_u32 s25, s24, 4096")
        a(f"buffer_load_dwordx4 {vr(b+20,4)}, v{L16}, s[8:11], s25 offen")
        a("s_add_u32 s23, s23, 1024")
        a("s_add_u32 s24, s24, 5120")
    npre = min(depth, nks_wave)
    for i in range(npre): load(i)
    srd(a, 12, 16, S * D * 2)
    srd(a, 28, 18, S * D * 2)
    for i in range(nks_wave):
        issued = min(nks_wave, i + npre)
        a(f"s_waitcnt vmcnt({6 * (issued - i - 1)})")
        b = FB + 24 * (i % depth)
        for ct in range(5):
            c = "0" if i == 0 else vr(ACC + 16 * ct, 16)
            a(f"v_mfma_f32_32x32x16_bf16 {vr(ACC+16*ct,16)}, {vr(b+4+4*ct,4)}, {vr(b,4)}, {c}")
        if i + npre < nks_wave: load(i + npre)
    a(f"""
    v_and_b32 v4, 31, v1
    v_mul_u32_u24 v4, 1280, v4
    v_lshrrev_b32 v5, 5, v1
    v_lshl_add_u32 v4, v5, 5, v4
    s_mul_i32 s26, s20, {32*1280}
    s_mul_i32 s27, s21, 320
    s_add_u32 s26, s26, s27
    s_min_u32 s27, s6, 4
    s_lshl_b32 s27, s27, 6
    s_add_u32 s26, s26, s27
    buffer_load_dwordx4 v[8:11], v4, s[12:15], s26 offen
    buffer_load_dwordx4 v[12:15], v4, s[12:15], s26 offen offset:16
    s_lshl_b32 s27, s6, 12
    v_add_u32 v6, s27, v{L16}
    v_add_u32 v7, 0x10000, v6
    v_add_u32 v3, 0x20000, v6
    s_nop 2
    """)
    for ct in range(5):
        base = [6, 6, 7, 7, 3][ct]
        for rg in range(4):
            a(f"ds_write_b128 v{base}, {vr(ACC+16*ct+4*rg,4)} offset:{(ct&1)*32768 + rg*1024}")
    a(f"""
    s_waitcnt lgkmcnt(0)
    s_barrier
    s_cmp_ge_u32 s6, 5
    s_cbranch_scc1 L_po_end
    s_lshl_b32 s27, s6, 15
    v_add_u32 v6, s27, v{L16}
    """)
    for w in range(8):
        for rg in range(4):
            a(f"ds_read_b128 {vr(ACC+16*w+4*rg,4)}, v6 offset:{w*4096 + rg*1024}")
        if w >= 2:
            a("s_waitcnt lgkmcnt(4)")
            for i in range(8):
                a(f"v_pk_add_f32 {vr(ACC+2*i,2)}, {vr(ACC+2*i,2)}, {vr(ACC+16*(w-1)+2*i,2)}")
    a("s_waitcnt lgkmcnt(0)")
    for i in range(8):
        a(f"v_pk_add_f32 {vr(ACC+2*i,2)}, {vr(ACC+2*i,2)}, {vr(ACC+16*7+2*i,2)}")
    a("s_waitcnt vmcnt(0)")
    for i in range(8):
        a(f"v_lshlrev_b32 v{ACC+16+2*i}, 16, v{8+i}")
        a(f"v_and_b32 v{ACC+17+2*i}, 0xffff0000, v{8+i}")
    for i in range(8):
        a(f"v_pk_add_f32 {vr(ACC+2*i,2)}, {vr(ACC+2*i,2)}, {vr(ACC+16+2*i,2)}")
    for i in range(8):
        a(f"v_cvt_pk_bf16_f32 v{8+i}, v{ACC+2*i}, v{ACC+2*i+1}")
    a(f"""
    buffer_store_dwordx4 v[8:11], v4, s[28:31], s26 offen
    buffer_store_dwordx4 v[12:15], v4, s[28:31], s26 offen offset:16
    """)
    a.label("L_po_end")
    a("s_endpgm")
    return kernel_desc(name, NV)
```

```python
from asmlib import *
from layout import *
import math, struct

def f32bits(x): return struct.unpack("<I", struct.pack("<f", x))[0]

XA = 4
WA = 8
DA = 14
DS = 24
XV = 29
XV2 = 13
SUM, SQ = 30, 31
XF = 32
WF = [48, 68]
CS = 88
ONES = 93
L16 = 94
ACC = 96
NV = 176
STAGE = 36864
XCH = 4 * STAGE
LDS_PRE = XCH + 5 * 1024
QSCALE = DH ** -0.5 * math.log2(math.e)

def quadmap(kind, u):
    if kind == "H": return [8 * u + g for g in range(8)]
    if kind == "Q":
        if u < 4: return [5 * (2 * u + (g >> 2)) + 2 * (g & 1) + ((g >> 1) & 1) for g in range(8)]
        return [5 * (4 * (g & 1) + (g >> 1)) + 4 for g in range(8)]
    if kind == "K": return [24, 26, 25, 27, 29, 24, 24, 24]
    if kind == "V": return [32, 35, 33, 37, 34, 32, 32, 32]

def issue_chunk(a):
    for i in range(4):
        a(f"s_add_u32 m0, s40, {i*1024}" if i else "s_mov_b32 m0, s40")
        a(f"s_add_u32 s43, s42, {i*8*1280}" if i else "s_mov_b32 s43, s42")
        a(f"buffer_load_dwordx4 v{XV2 if i & 1 else XV}, s[8:11], s43 offen lds")
    for j in range(5):
        a(f"s_add_u32 m0, s41, {j*4096}" if j else "s_mov_b32 m0, s41")
        a("s_nop 0")
        a(f"global_load_lds_dwordx4 {vr(DA+2*j,2)}, off")
    for j in range(5):
        a(f"v_add_co_u32 v{DA+2*j}, vcc, v{DA+2*j}, v{DS+j}")
        a("s_nop 1")
        a(f"v_addc_co_u32 v{DA+2*j+1}, vcc, 0, v{DA+2*j+1}, vcc")
    a(f"""
    s_add_u32 s42, s42, 128
    s_add_u32 s40, s40, {STAGE}
    s_add_u32 s41, s41, {STAGE}
    s_cmp_ge_u32 s40, {4*STAGE}
    s_cselect_b32 s43, {4*STAGE}, 0
    s_sub_u32 s40, s40, s43
    s_sub_u32 s41, s41, s43
    """)

def wreads(a, ks, buf):
    for u in range(5):
        for n in range(2):
            a(f"ds_read_b64_tr_b16 {vr(WF[buf]+4*u+2*n,2)}, v{WA+u} offset:{(16*ks+4*n)*320}")

def bf16_round(a, dst, src):
    a(f"v_cvt_pk_bf16_f32 v{dst}, v{src}, v{src}")
    a(f"v_and_b32 v{dst}, 0xffff0000, v{dst}")

def gen_pre(a, name):
    kernel_head(a, name)
    a(f"""
    s_cmp_ge_u32 s2, 256
    s_cbranch_scc1 L_pr_end
    s_load_dwordx8 s[44:51], s[0:1], 0
    s_load_dwordx2 s[52:53], s[0:1], {KA_WO}
    s_load_dwordx4 s[56:59], s[0:1], {KA_W1}     ; w1, w2
    s_load_dwordx2 s[4:5], s[0:1], {KA_WS}
    v_and_b32 v1, 63, v0                    ; lane
    v_lshrrev_b32 v2, 6, v0
    v_lshlrev_b32 v{L16}, 4, v1
    v_readfirstlane_b32 s6, v2
    s_and_b32 s20, s2, 7                    ; xcd
    s_lshr_b32 s21, s2, 3                   ; slot
    s_cmp_ge_u32 s21, 28
    s_cbranch_scc1 L_pr_relayout
    s_lshr_b32 s22, s20, 1
    s_lshl_b32 s22, s22, 2
    s_and_b32 s23, s21, 3
    s_add_u32 s22, s22, s23                 ; mt
    s_and_b32 s23, s20, 1
    s_mul_i32 s23, s23, 7
    s_lshr_b32 s24, s21, 2
    s_add_u32 s23, s23, s24                 ; ng
    s_lshl_b32 s25, s22, 2
    s_add_u32 s25, s25, s6
    v_lshrrev_b32 v2, 3, v1
    v_mul_u32_u24 v2, 1280, v2
    v_lshrrev_b32 v3, 4, v1
    v_and_b32 v32, 7, v1
    v_xor_b32 v33, v32, v3
    v_lshl_add_u32 v{XV}, v33, 4, v2
    v_xor_b32 v33, 4, v33
    v_lshl_add_u32 v{XV2}, v33, 4, v2
    s_mul_i32 s42, s25, {32*1280}           ; x soffset
    s_lshl_b32 s40, s6, 12
    s_lshl_b32 s41, s6, 10
    s_add_u32 s41, s41, 16384
    s_cmp_lt_u32 s23, 4
    s_mov_b32 s26, 3072
    s_cselect_b32 s26, 1280, s26            ; pitch
    s_sub_u32 s27, s23, 4
    s_cselect_b32 s27, s23, s27
    s_mul_i32 s27, s27, 320
    s_waitcnt lgkmcnt(0)
    """)
    srd(a, 8, 44, S * D * 2)
    srd(a, 12, 4, WS_SIZE)
    a(f"""
    s_cmp_lt_u32 s23, 4
    s_cselect_b32 s28, s46, s56
    s_cselect_b32 s29, s47, s57
    s_add_u32 s28, s28, s27
    s_addc_u32 s29, s29, 0
    s_lshl_b32 s30, s6, 6
    s_lshl_b32 s31, s26, 6
    """)
    for j in range(5):
        a(f"""
        v_add_u32 v32, s30, v1
        v_add_u32 v32, {j*256}, v32
        v_mul_u32_u24 v33, 3277, v32
        v_lshrrev_b32 v{34+j}, 16, v33
        v_mul_u32_u24 v33, 20, v{34+j}
        v_sub_u32 v{40+j}, v32, v33
        v_mul_u32_u24 v33, s26, v{34+j}
        v_lshl_add_u32 v33, v{40+j}, 4, v33
        v_mov_b32 v{DA+2*j+1}, s29
        v_add_co_u32 v{DA+2*j}, vcc, s28, v33
        v_mov_b32 v{DS+j}, s31
        s_nop 0
        v_addc_co_u32 v{DA+2*j+1}, vcc, 0, v{DA+2*j+1}, vcc
        """)
    a(f"""
    s_cmp_lg_u32 s23, 13
    s_cbranch_scc1 L_pr_addr_done
    """)
    for j in range(5):
        a(f"""
        v_cmp_le_u32 vcc, 12, v{40+j}
        s_and_saveexec_b64 s[60:61], vcc
        v_and_b32 v32, 3, v{40+j}
        v_lshlrev_b32 v32, 3, v32
        s_mov_b32 s62, 0x00181000
        v_lshrrev_b32 v32, v32, s62
        v_and_b32 v32, 0xff, v32
        v_mul_u32_u24 v33, 40, v{34+j}
        v_add_u32 v32, v32, v33
        v_mov_b32 v{DA+2*j}, s48
        v_mov_b32 v{DA+2*j+1}, s49
        v_mov_b32 v{DS+j}, {64*40}
        v_cmp_le_u32 vcc, 16, v{40+j}
        s_and_saveexec_b64 s[62:63], vcc
        v_mov_b32 v{DA+2*j}, s50
        v_mov_b32 v{DA+2*j+1}, s51
        s_mov_b64 exec, s[62:63]
        v_add_co_u32 v{DA+2*j}, vcc, v{DA+2*j}, v32
        s_nop 1
        v_addc_co_u32 v{DA+2*j+1}, vcc, 0, v{DA+2*j+1}, vcc
        s_mov_b64 exec, s[60:61]
        """)
    a.label("L_pr_addr_done")
    a("s_mov_b32 s33, 0")
    a.label("L_pr_fill")
    issue_chunk(a)
    a(f"""
    s_add_u32 s33, s33, 1
    s_cmp_lt_u32 s33, 4
    s_cbranch_scc1 L_pr_fill
    v_and_b32 v2, 31, v1
    v_lshrrev_b32 v3, 5, v1
    v_bfe_u32 v32, v1, 1, 3
    v_xor_b32 v32, v32, v3
    s_lshl_b32 s30, s6, 12
    v_lshlrev_b32 v33, 7, v2
    v_add_u32 v33, s30, v33
    """)
    for ks in range(4):
        a(f"v_xor_b32 v34, {2*ks}, v32")
        a(f"v_lshl_add_u32 v{XA+ks}, v34, 4, v33")
    a(f"""
    v_bfe_u32 v32, v1, 2, 2
    v_lshl_add_u32 v32, v3, 3, v32
    v_mul_u32_u24 v32, 320, v32
    v_add_u32 v32, 16384, v32
    v_bfe_u32 v33, v1, 4, 1
    v_and_b32 v34, 3, v1
    v_lshl_add_u32 v33, v33, 2, v34
    v_or_b32 v33, 0x0c0c0c00, v33
    """)
    for u in range(5):
        qlo, qhi = pack_bytes(quadmap("Q", u))
        hlo, hhi = pack_bytes(quadmap("H", u))
        a(f"""
        s_mov_b32 s30, {hlo:#x}
        s_mov_b32 s31, {hhi:#x}
        s_cmp_lt_u32 s23, 4
        s_cselect_b32 s30, {qlo:#x}, s30
        s_cselect_b32 s31, {qhi:#x}, s31
        """)
        if u >= 3:
            mlo, mhi = pack_bytes(quadmap("K" if u == 3 else "V", u))
            a(f"""
            s_cmp_eq_u32 s23, 13
            s_cselect_b32 s30, {mlo:#x}, s30
            s_cselect_b32 s31, {mhi:#x}, s31
            """)
        a(f"""
        v_mov_b32 v34, s30
        v_perm_b32 v34, s31, v34, v33
        v_lshl_add_u32 v{WA+u}, v34, 3, v32
        """)
    a(f"v_mov_b32 v{SUM}, 0")
    a(f"v_mov_b32 v{SQ}, 0")
    a(f"v_mov_b32 v{ONES}, 0x3f803f80")
    for u in range(5): a(f"v_mov_b32 v{CS+u}, 0")
    for i in range(80): a(f"v_mov_b32 v{ACC+i}, 0")
    a(f"""
    s_mov_b32 s33, 0                        ; chunk
    s_mov_b32 s34, 0
    s_waitcnt vmcnt(27)
    s_barrier
    s_branch L_pr_compute
    """)
    a.lines.append(".p2align 6")
    a.label("L_pr_loop")
    a(f"""
    s_cmp_ge_u32 s33, 8
    s_cbranch_scc1 L_pr_tailwait
    s_waitcnt vmcnt(18)
    s_barrier
    s_cmp_ge_u32 s33, 7
    s_cbranch_scc1 L_pr_compute
    """)
    issue_chunk(a)
    a.label("L_pr_compute")
    for ks in range(4):
        a(f"ds_read_b128 {vr(XF+4*ks,4)}, v{XA+ks}")
    wreads(a, 0, 0)
    a("s_waitcnt lgkmcnt(10)")
    for i in range(16):
        a(f"v_dot2c_f32_bf16 v{SUM}, v{XF+i}, v{ONES}")
        a(f"v_dot2c_f32_bf16 v{SQ}, v{XF+i}, v{XF+i}")
    for ks in range(4):
        b = ks & 1
        a("s_waitcnt lgkmcnt(0)")
        if ks < 3: wreads(a, ks + 1, b ^ 1)
        for u in range(5):
            a(f"v_mfma_f32_32x32x16_bf16 {vr(ACC+16*u,16)}, {vr(WF[b]+4*u,4)}, {vr(XF+4*ks,4)}, {vr(ACC+16*u,16)}")
        a(f"s_cmp_lg_u32 s6, {ks}")
        a(f"s_cbranch_scc1 L_pr_cs{ks}")
        for u in range(5):
            for i in range(4):
                a(f"v_dot2c_f32_bf16 v{CS+u}, v{WF[b]+4*u+i}, v{ONES}")
        a.label(f"L_pr_cs{ks}")
    a(f"""
    s_add_u32 s34, s34, {STAGE}
    s_cmp_ge_u32 s34, {4*STAGE}
    s_mov_b32 s35, {STAGE}
    s_cselect_b32 s35, {(-3*STAGE) & 0xffffffff:#x}, s35
    s_cselect_b32 s34, 0, s34
    """)
    for r in list(range(XA, XA + 4)) + list(range(WA, WA + 5)):
        a(f"v_add_u32 v{r}, s35, v{r}")
    a(f"""
    s_add_u32 s33, s33, 1
    s_cmp_lt_u32 s33, 10
    s_cbranch_scc1 L_pr_loop
    s_branch L_pr_epi
    """)
    a.label("L_pr_tailwait")
    a(f"""
    s_cmp_eq_u32 s33, 9
    s_cbranch_scc1 L_pr_tw0
    s_waitcnt vmcnt(9)
    s_barrier
    s_branch L_pr_compute
    """)
    a.label("L_pr_tw0")
    a(f"""
    s_waitcnt vmcnt(0)
    s_barrier
    s_branch L_pr_compute
    """)
    a.label("L_pr_epi")
    a(f"""
    s_lshl_b32 s30, s6, 2
    s_add_u32 s30, s30, {XCH}
    v_add_u32 v32, s30, v{L16}
    v_add_u32 v33, {XCH}, v{L16}
    """)
    for u in range(5):
        a(f"ds_write_b32 v32, v{CS+u} offset:{u*1024}")
    a(f"""
    v_mov_b32 v34, v{SUM}
    v_mov_b32 v35, v{SQ}
    s_nop 1
    v_permlane32_swap_b32 v34, v{SUM}
    v_permlane32_swap_b32 v35, v{SQ}
    s_nop 1
    v_add_f32 v34, v34, v{SUM}
    v_add_f32 v35, v35, v{SQ}
    v_mul_f32 v34, {f32bits(1.0/D):#x}, v34        ; mean
    v_mul_f32 v35, {f32bits(1.0/D):#x}, v35
    v_fma_f32 v35, -v34, v34, v35                  ; var
    v_max_f32 v35, 0, v35
    """)
    bf16_round(a, 35, 35)
    a(f"v_add_f32 v35, {f32bits(1e-5):#x}, v35")
    bf16_round(a, 35, 35)
    a("v_sqrt_f32 v35, v35")
    a("s_nop 0")
    bf16_round(a, 35, 35)
    a(f"""
    v_rcp_f32 v36, v35                             ; rstd
    v_sub_f32 v34, 0, v34
    v_cvt_pk_bf16_f32 v40, v34, v34
    v_mov_b32 v41, 0
    s_waitcnt lgkmcnt(0)
    s_barrier
    """)
    for u in range(5):
        a(f"ds_read_b128 {vr(48+4*u,4)}, v33 offset:{u*1024}")
    for u in range(5):
        r = 48 + 4 * u
        a(f"""
        s_waitcnt lgkmcnt({4-u})
        v_add_f32 v{r}, v{r}, v{r+1}
        v_add_f32 v{r+2}, v{r+2}, v{r+3}
        v_add_f32 v{r}, v{r}, v{r+2}
        v_cvt_pk_bf16_f32 v{r+1}, v{r}, v{r}
        v_and_b32 v{r+1}, 0xffff0000, v{r+1}
        v_sub_f32 v{r+1}, v{r}, v{r+1}
        v_cvt_pk_bf16_f32 v{r+2}, v{r}, v{r+1}
        v_mov_b32 v{r+3}, 0
        s_nop 1
        v_mfma_f32_32x32x8_bf16 {vr(ACC+16*u,16)}, {vr(r+2,2)}, v[40:41], {vr(ACC+16*u,16)}
        """)
    a(f"""
    s_cmp_ge_u32 s23, 4
    s_cbranch_scc1 L_pr_epi_h
    ; ---- Q group
    s_lshl_b32 s30, s25, 2
    s_add_u32 s30, s30, s23
    s_mul_i32 s30, s30, 10240
    s_add_u32 s30, s30, {WS_Q}
    v_mul_f32 v36, {f32bits(QSCALE):#x}, v36
    v_mov_b32 v37, v36
    s_nop 7
    """)
    for u in range(5):
        for i in range(8):
            r = ACC + 16 * u + 2 * i
            a(f"v_pk_mul_f32 {vr(r,2)}, {vr(r,2)}, v[36:37]")
        for i in range(8):
            r = ACC + 16 * u + 2 * i
            a(f"v_cvt_pk_bf16_f32 v{48+8*(u&1)+i}, v{r}, v{r+1}")
        a(f"buffer_store_dwordx4 {vr(48+8*(u&1),4)}, v{L16}, s[12:15], s30 offen")
        a(f"buffer_store_dwordx4 {vr(52+8*(u&1),4)}, v{L16}, s[12:15], s30 offen offset:1024")
        a(f"s_add_u32 s30, s30, 2048")
    a("s_endpgm")
    a.label("L_pr_epi_h")
    a(f"""
    s_mul_i32 s30, s25, {NKS}
    s_sub_u32 s31, s23, 4
    s_mul_i32 s31, s31, 10
    s_add_u32 s30, s30, s31
    s_add_u32 s30, s30, 40
    s_lshl_b32 s30, s30, 10
    s_add_u32 s30, s30, {WS_AH}
    v_mul_f32 v38, {f32bits(-math.log2(math.e)):#x}, v36
    v_mov_b32 v39, v38
    v_mov_b32 v34, v35
    s_nop 4
    """)
    for u in range(5):
        if u == 3:
            a("s_cmp_eq_u32 s23, 13")
            a("s_cbranch_scc1 L_pr_epi_kv")
        T = 64
        for i in range(8):
            r = ACC + 16 * u + 2 * i
            a(f"v_pk_mul_f32 {vr(T+2*i,2)}, {vr(r,2)}, v[38:39]")
        for i in range(16): a(f"v_exp_f32 v{T+i}, v{T+i}")
        for i in range(8): a(f"v_pk_fma_f32 {vr(T+2*i,2)}, {vr(T+2*i,2)}, v[34:35], v[34:35]")
        for i in range(16): a(f"v_rcp_f32 v{T+i}, v{T+i}")
        for i in range(8):
            r = ACC + 16 * u + 2 * i
            a(f"v_pk_mul_f32 {vr(T+2*i,2)}, {vr(T+2*i,2)}, {vr(r,2)}")
        for i in range(8):
            a(f"v_cvt_pk_bf16_f32 v{48+8*(u&1)+i}, v{T+2*i}, v{T+2*i+1}")
        a(f"buffer_store_dwordx4 {vr(48+8*(u&1),4)}, v{L16}, s[12:15], s30 offen")
        a(f"buffer_store_dwordx4 {vr(52+8*(u&1),4)}, v{L16}, s[12:15], s30 offen offset:1024")
        a(f"s_add_u32 s30, s30, 2048")
    a("s_endpgm")
    a.label("L_pr_epi_kv")
    K, V = ACC + 48, ACC + 64
    a(f"""
    s_mul_i32 s30, s25, {REC}
    s_add_u32 s30, s30, {WS_KV}
    """)
    for i in range(12): a(f"v_mul_f32 v{K+i}, v{K+i}, v36")
    for i in range(12): a(f"v_mul_f32 v{V+i}, v{V+i}, v36")
    for i in range(6): a(f"v_cvt_pk_bf16_f32 v{64+i}, v{K+2*i}, v{K+2*i+1}")
    for i in range(6): a(f"v_cvt_pk_bf16_f32 v{72+i}, v{V+2*i}, v{V+2*i+1}")
    a(f"""
    v_mov_b32 v78, 0x3f803f80
    buffer_store_dwordx4 v[64:67], v{L16}, s[12:15], s30 offen offset:{R_KA}
    v_bfe_u32 v80, v1, 4, 1
    v_mul_u32_u24 v80, {REC - R_VA}, v80
    v_bfe_u32 v81, v1, 2, 1
    v_mul_u32_u24 v81, {21*16}, v81
    v_and_b32 v82, 3, v1
    v_bfe_u32 v83, v1, 3, 1
    v_lshl_add_u32 v82, v83, 2, v82
    v_lshlrev_b32 v82, 1, v82
    v_add3_u32 v80, v80, v81, v82
    v_lshrrev_b32 v81, 5, v1
    v_mul_u32_u24 v81, {13*16}, v81
    v_add_u32 v80, v80, v81
    s_add_u32 s31, s30, {REC + R_VA}
    """)
    for i in range(8):
        hi = "_d16_hi" if i & 1 else ""
        a(f"buffer_store_short{hi} v{72+i//2}, v80, s[12:15], s31 offen offset:{i*16}")
    a(f"""
    v_lshlrev_b32 v81, 3, v1
    s_mov_b32 exec_hi, 0
    buffer_store_dwordx2 v[68:69], v81, s[12:15], s30 offen offset:{R_KB}
    """)
    for i in range(8, 13):
        hi = "_d16_hi" if i & 1 else ""
        a(f"buffer_store_short{hi} v{72+i//2}, v80, s[12:15], s31 offen offset:{i*16}")
    a(f"""
    v_mov_b32 v84, 0
    v_dot2c_f32_bf16 v84, v68, v68
    v_dot2c_f32_bf16 v84, v69, v69
    s_mov_b32 exec_lo, 0
    s_mov_b32 exec_hi, -1
    s_nop 2
    v_mov_b32 v84, 0
    s_mov_b64 exec, -1
    v_dot2c_f32_bf16 v84, v64, v64
    v_dot2c_f32_bf16 v84, v65, v65
    v_dot2c_f32_bf16 v84, v66, v66
    v_dot2c_f32_bf16 v84, v67, v67
    s_nop 2
    v_mov_b32 v85, v84
    s_nop 1
    v_permlane32_swap_b32 v85, v84
    s_nop 1
    v_add_f32 v84, v84, v85
    s_nop 1
    v_max_f32_dpp v84, v84, v84 row_shr:1 row_mask:0xf bank_mask:0xf bound_ctrl:0
    s_nop 1
    v_max_f32_dpp v84, v84, v84 row_shr:2 row_mask:0xf bank_mask:0xf bound_ctrl:0
    s_nop 1
    v_max_f32_dpp v84, v84, v84 row_shr:4 row_mask:0xf bank_mask:0xf bound_ctrl:0
    s_nop 1
    v_max_f32_dpp v84, v84, v84 row_shr:8 row_mask:0xf bank_mask:0xf bound_ctrl:0
    s_nop 1
    v_readlane_b32 s32, v84, 15
    v_readlane_b32 s33, v84, 31
    s_nop 3
    s_max_u32 s32, s32, s33
    s_lshl_b32 s31, s25, 2
    s_add_u32 s31, s31, {WS_KMAX}
    v_mov_b32 v84, s32
    v_mov_b32 v85, 0
    s_mov_b64 exec, 1
    buffer_store_dword v84, v85, s[12:15], s31 offen
    """)
    a.label("L_pr_end")
    a("s_endpgm")
    gen_relayout(a)
    return kernel_desc(name, NV)

def gen_relayout(a):
    a.label("L_pr_relayout")
    a(f"""
    s_sub_u32 s21, s21, 28
    s_lshl_b32 s21, s21, 3
    s_add_u32 s21, s21, s20                 ; job
    s_and_b32 s22, s21, 3                   ; cg
    s_lshr_b32 s23, s21, 2
    s_waitcnt lgkmcnt(0)
    """)
    srd(a, 12, 4, WS_SIZE)
    a(f"""
    s_cmp_lt_u32 s23, 6
    s_cselect_b32 s8, s58, s52
    s_cselect_b32 s9, s59, s53
    s_mov_b32 s10, {D*D*2}
    s_cselect_b32 s10, {F*D*2}, s10
    s_mov_b32 s11, 0x00020000
    s_sub_u32 s24, s23, 6
    s_mul_i32 s24, s24, {320*1280}
    s_mul_i32 s25, s23, {256*1280}
    s_cmp_lt_u32 s23, 6
    s_cselect_b32 s24, s25, s24
    s_cselect_b32 s26, 4, 5
    s_mul_i32 s25, s22, 320
    s_add_u32 s24, s24, s25
    s_lshl_b32 s30, s6, 6
    """)
    for j in range(5):
        a(f"""
        v_add_u32 v32, s30, v1
        v_add_u32 v32, {j*256}, v32
        v_mul_u32_u24 v33, 3277, v32
        v_lshrrev_b32 v34, 16, v33
        v_mul_u32_u24 v33, 20, v34
        v_sub_u32 v35, v32, v33
        v_mul_u32_u24 v33, 1280, v34
        v_lshl_add_u32 v{4+j}, v35, 4, v33
        """)
    a(f"""
    s_lshl_b32 s41, s6, 10
    s_mov_b32 s33, 0
    """)
    a.label("L_rl_fill")
    for j in range(5):
        a(f"s_add_u32 m0, s41, {j*4096}" if j else "s_mov_b32 m0, s41")
        a("s_nop 0")
        a(f"buffer_load_dwordx4 v{4+j}, s[8:11], s24 offen lds")
    cm = [4 * (g & 1) + (g >> 1) for g in range(8)]
    lo, hi = pack_bytes(cm)
    a(f"""
    s_add_u32 s41, s41, 20480
    s_add_u32 s24, s24, {64*1280}
    s_add_u32 s33, s33, 1
    s_cmp_lt_u32 s33, s26
    s_cbranch_scc1 L_rl_fill
    v_bfe_u32 v33, v1, 4, 1
    v_and_b32 v34, 3, v1
    v_lshl_add_u32 v33, v33, 2, v34
    v_or_b32 v33, 0x0c0c0c00, v33
    v_mov_b32 v34, {lo:#x}
    v_mov_b32 v35, {hi:#x}
    v_perm_b32 v34, v35, v34, v33
    v_lshlrev_b32 v34, 3, v34               ; quad*8
    v_lshrrev_b32 v3, 5, v1                 ; half
    v_bfe_u32 v32, v1, 2, 2                 ; r
    s_mul_i32 s30, s22, {NKS}
    s_cmp_ge_u32 s23, 6
    s_cbranch_scc1 L_rl_wo
    v_lshl_add_u32 v36, v3, 2, v32
    s_lshl_b32 s31, s6, 6
    v_add_u32 v36, s31, v36
    v_mul_u32_u24 v36, 320, v36
    v_add_u32 v36, v36, v34
    v_add_u32 v37, {8*320}, v36
    s_lshl_b32 s31, s23, 4
    s_add_u32 s30, s30, s31
    s_lshl_b32 s31, s6, 2
    s_add_u32 s30, s30, s31
    s_add_u32 s30, s30, 40
    s_mul_i32 s30, s30, 5120
    s_add_u32 s30, s30, {WS_W}
    s_mov_b32 s34, {16*320}
    s_mov_b32 s35, 4
    s_mov_b32 s36, 0
    s_waitcnt vmcnt(0)
    s_barrier
    s_branch L_rl_loop
    """)
    a.label("L_rl_wo")
    a(f"""
    s_mul_i32 s31, s6, 80
    v_lshl_add_u32 v36, v3, 4, v32
    v_add_u32 v36, s31, v36
    v_mul_u32_u24 v36, 320, v36
    v_add_u32 v36, v36, v34
    v_lshlrev_b32 v37, 3, v3
    v_sub_u32 v37, v32, v37
    v_add_u32 v37, 12, v37
    v_add_u32 v37, s31, v37
    v_mul_u32_u24 v37, 320, v37
    v_add_u32 v37, v37, v34
    v_lshrrev_b32 v38, 1, v32
    v_mul_u32_u24 v38, 20, v38
    v_and_b32 v39, 1, v32
    v_add_u32 v38, v38, v39
    v_lshlrev_b32 v39, 1, v3
    v_sub_u32 v38, v38, v39
    v_add_u32 v38, 10, v38
    v_add_u32 v38, s31, v38
    v_mul_u32_u24 v38, 320, v38
    v_add_u32 v38, v38, v34
    s_sub_u32 s31, s23, 6
    s_lshl_b32 s31, s31, 2
    s_add_u32 s31, s31, s6
    s_add_u32 s37, s30, s31
    s_add_u32 s37, s37, 32
    s_mul_i32 s37, s37, 5120
    s_add_u32 s37, s37, {WS_W}
    s_lshl_b32 s31, s31, 2
    s_add_u32 s30, s30, s31
    s_mul_i32 s30, s30, 5120
    s_add_u32 s30, s30, {WS_W}
    s_mov_b32 s34, {20*320}
    s_mov_b32 s35, 4
    s_mov_b32 s36, 1
    s_waitcnt vmcnt(0)
    s_barrier
    """)
    a.label("L_rl_loop")
    for ct in range(5):
        a(f"ds_read_b64_tr_b16 {vr(48+4*ct,2)}, v36 offset:{ct*64}")
        a(f"ds_read_b64_tr_b16 {vr(50+4*ct,2)}, v37 offset:{ct*64}")
    a("s_add_u32 s31, s30, 4096")
    for ct in range(5):
        a(f"s_waitcnt lgkmcnt({8-2*ct})")
        if ct < 4: a(f"buffer_store_dwordx4 {vr(48+4*ct,4)}, v{L16}, s[12:15], s30 offen offset:{ct*1024}")
        else: a(f"buffer_store_dwordx4 {vr(48+4*ct,4)}, v{L16}, s[12:15], s31 offen")
    a(f"""
    v_add_u32 v36, s34, v36
    v_add_u32 v37, s34, v37
    s_add_u32 s30, s30, 5120
    s_sub_u32 s35, s35, 1
    s_cmp_lg_u32 s35, 0
    s_cbranch_scc1 L_rl_loop
    s_cmp_eq_u32 s36, 0
    s_cbranch_scc1 L_pr_end
    s_mov_b32 s36, 0
    s_mov_b32 s35, 1
    s_mov_b32 s30, s37
    v_mov_b32 v36, v38
    v_add_u32 v37, {40*320}, v38
    s_branch L_rl_loop
    """)
```

```python
S, D, H, DH, F = 2048, 640, 32, 20, 1536
NKS = 136
WS_Q    = 0x000000
WS_AH   = 0x280000
WS_W    = 0xB00000
WS_KV   = 0xDC0000
WS_KMAX = 0xDF0000
WS_FLAG = 0xDF1000
WS_SIZE = 0xE00000
assert WS_AH + 64 * NKS * 1024 <= WS_W and WS_W + 4 * NKS * 5120 <= WS_KV
REC = 2624
R_VB, R_VA, R_KA, R_KB = 0, 672, 1344, 2368
def vpos(d):
    if d == 20: return 12
    return d + (1 if d >= 12 else 0)
PV_BASE = [0, 17, 13, 4, 10, 8, 12, 12]
ODIM = [[0, 1, 2, 3, 12, 13, 14, 15, 10, 11], [16, 17, 18, 19, 4, 5, 6, 7, 8, 9]]
SUMREG = 12
KA_X, KA_WQ, KA_WK, KA_WV, KA_WO, KA_BX, KA_W1, KA_W2, KA_OUT, KA_DBG, KA_WS = [8 * i for i in range(11)]
def pack_bytes(b):
    assert len(b) == 8
    lo = b[0] | b[1] << 8 | b[2] << 16 | b[3] << 24
    hi = b[4] | b[5] << 8 | b[6] << 16 | b[7] << 24
    return lo, hi
```

```python
import sys
from asmlib import *
from layout import *
from k_pre import gen_pre, LDS_PRE
from k_attn import gen_attn
from k_post import gen_post
NAME = "parallel_sum__grouped_kv_mqa__dense_activation_silu__prompt"
def build(path, prof=False):
    a = Asm()
    ref = open(f"cdna_kernels/{NAME}.s.ref").read().split("\n")
    hdr = [l for l in ref if l.startswith(";") and "@launch" not in l and "Override launch" not in l and "grid=ceil" not in l]
    hdr.append(f"; @launch kernel=pre_kernel grid=(256,1,1) block=(256,1,1) lds={LDS_PRE}")
    hdr.append(f"; @launch kernel=attn_kernel grid=(256,1,1) block=(768,1,1) lds=163840")
    hdr.append(f"; @launch kernel=post_kernel grid=(256,1,1) block=(512,1,1) lds=163840")
    d = [gen_pre(a, "pre_kernel"), gen_attn(a, "attn_kernel", prof=prof), gen_post(a, "post_kernel", 0, 17)]
    txt = "\n".join(hdr) + '\n.amdgcn_target "amdgcn-amd-amdhsa--gfx950"\n' + a.text() + '.section .rodata,"a"\n'
    for x in d: txt += ".p2align 6\n" + x
    open(path, "w").write(txt)
if __name__ == "__main__":
    build(f"cdna_kernels/{NAME}.s")
    build("prof.s", prof=True)
```

```python
class Asm:
    def __init__(self):
        self.lines = []
    def __call__(self, s):
        for ln in s.split("\n"):
            ln = ln.rstrip()
            if not ln.strip():
                continue
            if ln.strip().endswith(":") or ln.startswith("."):
                self.lines.append(ln.strip())
            else:
                self.lines.append("    " + ln.strip())
    def label(self, name):
        self.lines.append(name + ":")
    def comment(self, s):
        self.lines.append("    ; " + s)
    def text(self):
        return "\n".join(self.lines) + "\n"

def vr(a, n=1):
    return f"v{a}" if n == 1 else f"v[{a}:{a+n-1}]"
def sr(a, n=1):
    return f"s{a}" if n == 1 else f"s[{a}:{a+n-1}]"

def kernel_head(a, name):
    a.lines.append(".text")
    a.lines.append(f".globl {name}")
    a.lines.append(".p2align 8")
    a.lines.append(f".type {name},@function")
    a.lines.append(f"{name}:")

def kernel_desc(name, nvgpr, nsgpr=102, accum=None):
    acc = accum if accum is not None else min(256, (nvgpr + 3) // 4 * 4)
    return f""".amdhsa_kernel {name}
  .amdhsa_next_free_vgpr {nvgpr}
  .amdhsa_next_free_sgpr {nsgpr}
  .amdhsa_accum_offset {acc}
  .amdhsa_group_segment_fixed_size 0
  .amdhsa_kernarg_size 88
  .amdhsa_user_sgpr_count 2
  .amdhsa_user_sgpr_kernarg_segment_ptr 1
  .amdhsa_system_sgpr_workgroup_id_x 1
  .amdhsa_float_denorm_mode_32 3
  .amdhsa_float_denorm_mode_16_64 3
.end_amdhsa_kernel
"""

def srd(a, s, ptr, nbytes, off=0):
    if off:
        a(f"s_add_u32 s{s}, s{ptr}, {off}")
        a(f"s_addc_u32 s{s+1}, s{ptr+1}, 0")
    else:
        a(f"s_mov_b32 s{s}, s{ptr}")
        a(f"s_mov_b32 s{s+1}, s{ptr+1}")
    a(f"s_mov_b32 s{s+2}, {nbytes}")
    a(f"s_mov_b32 s{s+3}, 0x00020000")

class Prof:
    def __init__(self, a, on, base, slot, nwaves):
        self.a, self.on, self.base, self.slot, self.nw = a, on, base, slot, nwaves
        self.n = 0
    def start(self):
        if not self.on: return
        self.a(f"s_memrealtime s[{self.base}:{self.base+1}]")
        self.n = 1
        self.stamp()
    def stamp(self):
        if not self.on: return
        b = self.base + 2 * self.n
        self.a(f"s_memtime s[{b}:{b+1}]")
        self.n += 1
    def dump(self, n=None, wave="s6", vtmp=200, last=None):
        if not self.on: return
        a = self.a; b = self.base
        n = n or self.n
        e = b + 2 * n
        a(f"s_memtime s[{e}:{e+1}]")
        a(f"s_memrealtime s[{e+2}:{e+3}]")
        a(f"s_load_dwordx2 s[{e+4}:{e+5}], s[0:1], 40")
        a("s_waitcnt lgkmcnt(0)")
        a(f"s_lshl_b32 s{b+1}, s2, 4")
        a(f"s_add_u32 s{b+1}, s{b+1}, {wave}")
        a(f"s_lshl_b32 s{b+1}, s{b+1}, 5")
        a(f"s_add_u32 s{b+1}, s{b+1}, {self.slot * 0x40000}")
        a(f"v_mov_b32 v{vtmp+8}, s{b+1}")
        vals = [f"s{b}", f"s{e+2}"] + [f"s{b+2*i}" for i in range(1, n + 1)]
        if last: vals[-1] = last
        vals += ["0"] * (8 - len(vals))
        assert len(vals) == 8, vals
        for i, v in enumerate(vals): a(f"v_mov_b32 v{vtmp+i}, {v}")
        a(f"global_store_dwordx4 v{vtmp+8}, v[{vtmp}:{vtmp+3}], s[{e+4}:{e+5}]")
        a(f"global_store_dwordx4 v{vtmp+8}, v[{vtmp+4}:{vtmp+7}], s[{e+4}:{e+5}] offset:16")
        a("s_nop 1")
```

```python
from asmlib import *
from layout import *
import os
EXP = os.environ.get('EXP', '')

Q1, Q2 = 4, 8
A_V, A_KA, A_KB = 10, 11, 12
G_V, G_KA, G_KB = 13, 14, 15
CM = 16
SB = [32, 48]
O = 64
P = 80
GB = [dict(vb=88, va=92, ka=96, kb=100), dict(vb=104, va=108, ka=112, kb=116)]
K0A, K0B = 120, 124
VCNT = 128
NV = 168
GACC = 16
GFB = 96
GDEPTH = 3
U = 8
NLOAD = 4
CNT = 163584

def tile_body(a, t_par, first, reads, pre=None):
    g = GB[t_par]; gn = GB[t_par ^ 1]
    s = SB[t_par]; sn = SB[t_par ^ 1]
    def e(i): a(f"v_exp_f32 v{s+i}, v{s+i}")
    def c(i): a(f"v_cvt_pk_bf16_f32 v{P+i}, v{s+2*i}, v{s+2*i+1}")
    def rd(which):
        if reads is None: return
        if which == "ka": a(f"ds_read_b128 {vr(gn['ka'],4)}, v{A_KA} offset:{reads}")
        if which == "kb": a(f"ds_read_b64 {vr(gn['kb'],2)}, v{A_KB} offset:{reads}")
        if which == "vb": a(f"ds_read_b128 {vr(gn['vb'],4)}, v{A_V} offset:{reads}")
        if which == "va": a(f"ds_read_b128 {vr(gn['va'],4)}, v{A_V} offset:{reads+R_VA}")
    a("s_waitcnt lgkmcnt(0)")
    if pre: pre()
    a(f"v_mfma_f32_32x32x16_bf16 {vr(sn,16)}, {vr(g['ka'],4)}, {vr(Q1,4)}, {vr(CM,16)}")
    rd("ka"); e(0); e(1); e(2); c(0); e(3)
    if not first:
        a(f"v_mfma_f32_32x32x16_bf16 {vr(O,16)}, {vr(g['vb'],4)}, {vr(P+4,4)}, {vr(O,16)}")
    rd("kb"); e(4); c(1); e(5); e(6); c(2); e(7)
    a(f"v_mfma_f32_32x32x8_bf16 {vr(sn,16)}, {vr(g['kb'],2)}, {vr(Q2,2)}, {vr(sn,16)}")
    rd("vb"); e(8); c(3); e(9); e(10); c(4); e(11)
    a(f"v_mfma_f32_32x32x16_bf16 {vr(O,16)}, {vr(g['va'],4)}, {vr(P,4)}, {'0' if first else vr(O,16)}")
    rd("va"); e(12); c(5); e(13); e(14); e(15); c(6); c(7)

def cnt_add(a, off):
    a(f"""
    s_mov_b64 exec, 1
    ds_add_u32 v{VCNT}, v{VCNT+1} offset:{off}
    s_mov_b64 exec, -1
    """)

def gen_attn(a, name, prof=False):
    kernel_head(a, name)
    if prof:
        a('s_memtime s[96:97]')
        a('s_memrealtime s[100:101]')
    lo, hi = pack_bytes(PV_BASE)
    a(f"""
    s_cmp_ge_u32 s2, 256
    s_cbranch_scc1 L_at_end
    s_load_dwordx2 s[4:5], s[0:1], {KA_WS}
    v_and_b32 v1, 63, v0                    ; lane
    v_lshrrev_b32 v2, 6, v0
    v_lshlrev_b32 v127, 4, v1               ; lane*16
    v_readfirstlane_b32 s6, v2
    v_and_b32 v2, 31, v1                    ; l&31
    v_lshrrev_b32 v3, 5, v1                 ; half
    v_add_u32 v{G_KA}, {R_KA}, v127
    v_lshlrev_b32 v{G_KB}, 3, v2
    v_add_u32 v{G_KB}, {R_KB}, v{G_KB}
    v_lshlrev_b32 v126, 4, v2               ; (l&31)*16
    s_and_b32 s3, s2, 7
    s_lshl_b32 s3, s3, 5
    s_lshr_b32 s7, s2, 3
    s_add_u32 s3, s3, s7                    ; block = tt*4 + hg (the four blocks of a token tile share id%8)
    s_mul_i32 s7, s3, 10240
    s_lshl_b32 s12, s6, 10
    s_add_u32 s12, s12, s7
    s_lshr_b32 s13, s6, 1
    s_and_b32 s13, s13, 1
    s_lshl_b32 s13, s13, 10
    s_lshr_b32 s14, s6, 2
    s_lshl_b32 s14, s14, 9
    s_add_u32 s13, s13, s14
    s_and_b32 s14, s6, 1
    s_lshl_b32 s14, s14, 3
    s_add_u32 s13, s13, s14
    s_add_u32 s13, s13, s7
    s_add_u32 s13, s13, 8192
    s_waitcnt lgkmcnt(0)
    """)
    srd(a, 8, 4, WS_SIZE)
    a(f"""
    s_cmp_ge_u32 s6, 8
    s_cbranch_scc1 L_at_loader
    s_setprio 3
    buffer_load_dwordx4 {vr(Q1,4)}, v127, s[8:11], s12 offen
    buffer_load_dwordx2 {vr(Q2,2)}, v126, s[8:11], s13 offen
    s_add_u32 s16, s4, {WS_KMAX}
    s_addc_u32 s17, s5, 0
    s_load_dwordx16 s[32:47], s[16:17], 0
    s_load_dwordx16 s[48:63], s[16:17], 64
    s_load_dwordx16 s[64:79], s[16:17], 128
    s_load_dwordx16 s[80:95], s[16:17], 192
    v_lshrrev_b32 v{G_V}, 2, v2
    v_or_b32 v{G_V}, 0x0c0c0c00, v{G_V}
    v_mov_b32 v16, {lo:#x}
    v_mov_b32 v17, {hi:#x}
    v_perm_b32 v{G_V}, v17, v16, v{G_V}
    v_and_b32 v16, 3, v1
    v_mul_u32_u24 v17, 21, v3
    v_add3_u32 v{G_V}, v{G_V}, v16, v17
    v_lshlrev_b32 v{G_V}, 4, v{G_V}
    s_mov_b32 s19, {WS_KV}
    s_mov_b32 s20, {WS_KV + REC}
    s_mov_b32 s21, {WS_KV + 2*REC}
    buffer_load_dwordx4 {vr(K0A,4)}, v{G_KA}, s[8:11], s19 offen
    buffer_load_dwordx2 {vr(K0B,2)}, v{G_KB}, s[8:11], s19 offen
    buffer_load_dwordx4 {vr(GB[0]['ka'],4)}, v{G_KA}, s[8:11], s20 offen
    buffer_load_dwordx2 {vr(GB[0]['kb'],2)}, v{G_KB}, s[8:11], s20 offen
    buffer_load_dwordx4 {vr(GB[0]['va'],4)}, v{G_V}, s[8:11], s20 offen offset:{R_VA}
    buffer_load_dwordx4 {vr(GB[1]['ka'],4)}, v{G_KA}, s[8:11], s21 offen
    buffer_load_dwordx2 {vr(GB[1]['kb'],2)}, v{G_KB}, s[8:11], s21 offen
    buffer_load_dwordx4 {vr(GB[1]['va'],4)}, v{G_V}, s[8:11], s21 offen offset:{R_VA}
    buffer_load_dwordx4 {vr(GB[1]['vb'],4)}, v{G_V}, s[8:11], s21 offen
    v_mov_b32 v{A_V}, v{G_V}
    v_mov_b32 v{A_KA}, v{G_KA}
    v_mov_b32 v{A_KB}, v{G_KB}
    v_mov_b32 v{VCNT}, {CNT}
    v_mov_b32 v{VCNT+1}, 1
    """)
    m = 0
    for i in (18, 19, 22, 23, 25, 26, 27, 29, 30, 31): m |= 1 << i
    a(f"""
    s_mov_b32 exec_lo, {m:#x}
    s_mov_b32 exec_hi, {m:#x}
    v_mov_b32 v{A_V}, 0x40000
    s_mov_b32 exec_lo, 0
    s_mov_b32 exec_hi, -1
    v_mov_b32 v{A_KB}, 0x40000
    s_mov_b64 exec, -1
    """)
    a("s_waitcnt lgkmcnt(0)")
    for i in range(33, 96):
        a(f"s_max_u32 s32, s32, s{i}")
    a(f"""
    s_waitcnt vmcnt(9)
    s_mov_b32 exec_lo, 0
    v_mov_b32 v{Q2}, 0
    v_mov_b32 v{Q2+1}, 0
    s_mov_b64 exec, -1
    v_mov_b32 v2, 0
    v_dot2c_f32_bf16 v2, v{Q1}, v{Q1}
    v_dot2c_f32_bf16 v2, v{Q1+1}, v{Q1+1}
    v_dot2c_f32_bf16 v2, v{Q1+2}, v{Q1+2}
    v_dot2c_f32_bf16 v2, v{Q1+3}, v{Q1+3}
    v_dot2c_f32_bf16 v2, v{Q2}, v{Q2}
    v_dot2c_f32_bf16 v2, v{Q2+1}, v{Q2+1}
    s_nop 2
    v_mov_b32 v3, v2
    s_nop 1
    v_permlane32_swap_b32 v3, v2
    s_nop 1
    v_add_f32 v2, v2, v3
    v_mul_f32 v2, s32, v2
    v_sqrt_f32 v2, v2
    s_nop 0
    v_sub_f32 v{CM}, 0, v2
    """)
    for i in range(1, 16):
        a(f"v_mov_b32 v{CM+i}, v{CM}")
    if prof:
        a('s_memtime s[98:99]')
        a('s_waitcnt lgkmcnt(0)')
    a(f"""
    s_waitcnt vmcnt(7)
    s_nop 0
    v_mfma_f32_32x32x16_bf16 {vr(SB[0],16)}, {vr(K0A,4)}, {vr(Q1,4)}, {vr(CM,16)}
    v_mfma_f32_32x32x8_bf16 {vr(SB[0],16)}, {vr(K0B,2)}, {vr(Q2,2)}, {vr(SB[0],16)}
    s_nop 10
    s_waitcnt vmcnt(4)
    """)
    def barrier(n, extra=""):
        def f():
            a(extra)
            a("s_barrier")
            if prof: a(f"s_memtime s[{76+2*n}:{77+2*n}]")
        return f
    for t in range(U):
        pre = barrier(0, "s_waitcnt vmcnt(0)") if t == 1 else None
        tile_body(a, t & 1, t == 0, None if t == 0 else (t - 1) * REC, pre)
    a(f"""
    v_add_u32 v{A_V}, {(U-1)*REC}, v{A_V}
    v_add_u32 v{A_KA}, {(U-1)*REC}, v{A_KA}
    v_add_u32 v{A_KB}, {(U-1)*REC}, v{A_KB}
    s_mov_b32 s24, 1
    """)
    barrier(1)()
    a.lines.append(".p2align 6")
    a.label("L_at_loop")
    for u in range(U):
        tile_body(a, u & 1, False, u * REC)
    a(f"""
    v_add_u32 v{A_V}, {U*REC}, v{A_V}
    v_add_u32 v{A_KA}, {U*REC}, v{A_KA}
    v_add_u32 v{A_KB}, {U*REC}, v{A_KB}
    s_add_u32 s24, s24, 1
    s_cmp_lt_u32 s24, 4
    s_cbranch_scc1 L_at_loop
    s_cmp_lg_u32 s24, 4
    s_cbranch_scc1 L_at_p0
    """)
    cnt_add(a, 0)
    a("s_branch L_at_loop")
    a.label("L_at_p0")
    a("""
    s_cmp_lg_u32 s24, 5
    s_cbranch_scc1 L_at_p1
    s_setprio 2
    s_branch L_at_loop
    """)
    a.label("L_at_p1")
    a("""
    s_cmp_lg_u32 s24, 6
    s_cbranch_scc1 L_at_p2
    """)
    cnt_add(a, 4)
    a("s_branch L_at_loop")
    a.label("L_at_p2")
    a(f"""
    s_setprio 1
    s_cmp_lt_u32 s24, {64//U}
    s_cbranch_scc1 L_at_loop
    s_waitcnt lgkmcnt(0)
    v_mfma_f32_32x32x16_bf16 {vr(O,16)}, {vr(GB[0]['vb'],4)}, {vr(P+4,4)}, {vr(O,16)}
    """)
    cnt_add(a, 8)
    a(f"""
    s_mov_b32 s26, 0x12800000               ; 2^-90
    ; O' addresses: main piece (tt*136 + head) KB, leftover (tt*136 + 32 + head/4) KB + (head%4)*4
    s_lshr_b32 s12, s3, 2
    s_mul_i32 s12, s12, {NKS}
    s_and_b32 s13, s3, 3
    s_lshl_b32 s13, s13, 3
    s_add_u32 s13, s13, s6                  ; head
    s_add_u32 s14, s12, s13
    s_lshl_b32 s14, s14, 10
    s_add_u32 s14, s14, {WS_AH}
    s_lshr_b32 s15, s13, 2
    s_add_u32 s15, s15, s12
    s_lshl_b32 s15, s15, 10
    s_and_b32 s13, s13, 3
    s_lshl_b32 s13, s13, 2
    s_add_u32 s15, s15, s13
    s_add_u32 s15, s15, {WS_AH + 32*1024}
    v_cmp_nle_f32 vcc, s26, v{O+SUMREG}
    s_cbranch_vccnz L_at_fallback
    """)
    a.label("L_at_fin")
    a(f"v_rcp_f32 v2, v{O+SUMREG}")
    a("s_nop 0")
    for i in range(10):
        a(f"v_mul_f32 v{O+i}, v{O+i}, v2")
    for i in range(5):
        a(f"v_cvt_pk_bf16_f32 v{P+i}, v{O+2*i}, v{O+2*i+1}")
    a(f"""
    buffer_store_dwordx4 {vr(P,4)}, v127, s[8:11], s14 offen sc1
    buffer_store_dword v{P+4}, v127, s[8:11], s15 offen sc1
    s_lshr_b32 s12, s3, 2
    s_lshl_b32 s12, s12, 7
    s_and_b32 s13, s3, 3
    s_lshl_b32 s13, s13, 2
    s_add_u32 s12, s12, s13
    s_add_u32 s12, s12, {WS_FLAG}
    v_mov_b32 v3, 0
    s_mov_b64 exec, 1
    s_waitcnt vmcnt(0)
    ds_add_rtn_u32 v2, v{VCNT}, v{VCNT+1} offset:12
    s_waitcnt lgkmcnt(0)
    v_readfirstlane_b32 s13, v2
    s_cmp_lg_u32 s13, 7
    s_cbranch_scc1 L_at_done
    buffer_store_dword v{VCNT+1}, v3, s[8:11], s12 offen sc1
    """)
    a.label("L_at_done")
    if prof:
        a("""
        s_mov_b64 exec, -1
        s_mov_b32 s70, s100
        s_mov_b32 s72, s96
        s_mov_b32 s74, s98
        """)
        pf = Prof(a, True, 70, 1, 12); pf.n = 5
        pf.dump(vtmp=88)
    a.label("L_at_end")
    a("s_endpgm")
    gen_helper(a, prof)
    gen_fallback(a)
    return kernel_desc(name, NV)

def lds_poll(a, off, lbl):
    a.label(lbl)
    a(f"""
    ds_read_b32 v3, v0 offset:{off}
    s_waitcnt lgkmcnt(0)
    v_readfirstlane_b32 s27, v3
    s_cmp_ge_u32 s27, 8
    s_cbranch_scc1 {lbl}_ok
    s_sleep 2
    s_branch {lbl}
    """)
    a.label(lbl + "_ok")

def gen_helper(a, prof):
    a.label("L_at_loader")
    a(f"""
    v_mov_b32 v2, v127
    v_mov_b32 v0, {CNT}
    v_mov_b32 v4, 0
    v_mov_b32 v5, 0
    v_mov_b32 v6, 0
    v_mov_b32 v7, 0
    ds_write_b128 v0, v[4:7]
    s_sub_u32 s7, s6, 8                     ; g
    s_lshl_b32 s22, s7, 10
    s_add_u32 s23, s22, {WS_KV + 3*REC}
    """)
    n = 160 // NLOAD
    step = 1024 * NLOAD
    for i in range(n):
        if i == n - 1:
            a("""
            s_cmp_eq_u32 s7, 3
            s_cselect_b32 exec_hi, 3, -1
            """)
        a(f"s_mov_b32 m0, s22")
        a(f"s_add_u32 s22, s22, {step}")
        a(f"buffer_load_dwordx4 v2, s[8:11], s23 offen lds")
        a(f"s_add_u32 s23, s23, {step}")
        if i == 9:
            a(f"s_waitcnt vmcnt({10 - 24576 // step}) lgkmcnt(0)")
            a("s_barrier")
    a(f"""
    s_mov_b64 exec, -1
    s_load_dwordx2 s[16:17], s[0:1], {KA_X}
    s_load_dwordx2 s[18:19], s[0:1], {KA_OUT}
    s_lshr_b32 s20, s3, 2                   ; tt
    s_and_b32 s21, s3, 3                    ; cg
    s_mul_i32 s22, s7, 24
    s_add_u32 s22, s22, 40
    s_mul_i32 s33, s20, {NKS}
    s_add_u32 s23, s33, s22
    s_lshl_b32 s23, s23, 10
    s_add_u32 s23, s23, {WS_AH}             ; H' offset
    s_mul_i32 s34, s21, {NKS}
    s_add_u32 s24, s34, s22
    s_mul_i32 s24, s24, 5120
    s_add_u32 s24, s24, {WS_W}              ; W' offset
    """)
    def gload(i):
        b = GFB + 24 * (i % GDEPTH)
        a(f"buffer_load_dwordx4 {vr(b,4)}, v2, s[8:11], s23 offen")
        for ct in range(4):
            a(f"buffer_load_dwordx4 {vr(b+4+4*ct,4)}, v2, s[8:11], s24 offen offset:{ct*1024}")
        a("s_add_u32 s25, s24, 4096")
        a(f"buffer_load_dwordx4 {vr(b+20,4)}, v2, s[8:11], s25 offen")
        a("s_add_u32 s23, s23, 1024")
        a("s_add_u32 s24, s24, 5120")
    def gmfma(i):
        b = GFB + 24 * (i % GDEPTH)
        for ct in range(5):
            a(f"v_mfma_f32_32x32x16_bf16 {vr(GACC+16*ct,16)}, {vr(b+4+4*ct,4)}, {vr(b,4)}, {vr(GACC+16*ct,16)}")
    for i in range(GDEPTH): gload(i)
    for i in range(80): a(f"v_mov_b32 v{GACC+i}, 0")
    a(f"""
    s_waitcnt vmcnt({6*GDEPTH})
    s_barrier
    s_mov_b32 s26, {24 // GDEPTH - 1}
    """)
    a.label("L_at_gloop")
    for i in range(GDEPTH):
        a(f"s_waitcnt vmcnt({6*(GDEPTH-1)})")
        gmfma(i)
        gload(i)
    a("""
    s_sub_u32 s26, s26, 1
    s_cmp_lg_u32 s26, 0
    s_cbranch_scc1 L_at_gloop
    """)
    for i in range(GDEPTH):
        a(f"s_waitcnt vmcnt({6*(GDEPTH-1-i)})")
        gmfma(i)
    WA_, WB_, WX = GFB, GFB + 20, GFB + 40
    OF = [GFB + 44 + 4 * i for i in range(7)] + [4, 8, 12]
    a(f"""
    s_lshl_b32 s22, s7, 1
    s_add_u32 s22, s22, 32
    s_add_u32 s24, s34, s22
    s_mul_i32 s24, s24, 5120
    s_add_u32 s24, s24, {WS_W}
    s_lshl_b32 s35, s7, 3
    s_add_u32 s36, s34, s35
    s_mul_i32 s36, s36, 5120
    s_add_u32 s36, s36, {WS_W}
    """)
    for f in range(10):
        if f % 4 == 0 and f: a("s_add_u32 s24, s24, 4096")
        a(f"buffer_load_dwordx4 {vr(WA_+4*f,4)}, v2, s[8:11], s24 offen offset:{(f%4)*1024}")
    a(f"buffer_load_dwordx4 {vr(WX,4)}, v2, s[8:11], s36 offen")
    a(f"""
    s_add_u32 s36, s36, 1024
    s_lshl_b32 s37, s7, 10
    """)
    def wdma(n):
        for _ in range(n):
            a("s_mov_b32 m0, s37")
            a("s_add_u32 s37, s37, 4096")
            a("buffer_load_dwordx4 v2, s[8:11], s36 offen lds")
            a("s_add_u32 s36, s36, 1024")
    lds_poll(a, 0, "L_at_w0"); wdma(19)
    lds_poll(a, 4, "L_at_w1"); wdma(10)
    lds_poll(a, 8, "L_at_w2"); wdma(10)
    a(f"""
    s_setprio 3
    s_lshl_b32 s12, s20, 7
    s_lshl_b32 s13, s7, 2
    s_add_u32 s12, s12, s13
    s_add_u32 s12, s12, {WS_FLAG}
    s_add_u32 s23, s33, s22
    s_lshl_b32 s23, s23, 10
    s_add_u32 s23, s23, {WS_AH}
    s_add_u32 s25, s33, s35
    s_lshl_b32 s25, s25, 10
    s_add_u32 s25, s25, {WS_AH}
    s_add_u32 s26, s25, 4096
    v_mov_b32 v0, 0
    s_mov_b32 s28, 0
    """)
    a.label("L_at_fpoll")
    a(f"""
    buffer_load_dword v3, v0, s[8:11], s12 offen sc1
    s_add_u32 s28, s28, 1
    s_waitcnt vmcnt(0)
    v_readfirstlane_b32 s27, v3
    s_cmp_eq_u32 s27, 1
    s_cbranch_scc1 L_at_fok
    s_cmp_lt_u32 s28, 0x400000
    s_cbranch_scc1 L_at_fpoll
    """)
    a.label("L_at_fok")
    for j in range(10):
        if j < 2: a(f"buffer_load_dwordx4 {vr(OF[j],4)}, v2, s[8:11], s23 offen offset:{j*1024} sc1")
        else: a(f"buffer_load_dwordx4 {vr(OF[j],4)}, v2, s[8:11], {'s25' if j < 6 else 's26'} offen offset:{((j-2)%4)*1024} sc1")
    if prof: a("s_memtime s[96:97]\ns_waitcnt vmcnt(9)\ns_memtime s[74:75]\ns_waitcnt lgkmcnt(0)")
    a(f"""
    s_lshl_b32 s27, s7, 10
    v_add_u32 v0, s27, v2
    v_add_u32 v3, 0x10000, v0
    """)
    def wreg(j, ct):
        if j == 2 and ct == 0: return WX
        return (WA_ if j % 2 == 0 else WB_) + 4 * ct
    outstanding = []
    hi_set = False
    for j in range(10):
        a(f"s_waitcnt vmcnt({9-j})")
        for ct in range(5):
            if (j, ct) in outstanding:
                k = outstanding.index((j, ct))
                a(f"s_waitcnt lgkmcnt({len(outstanding)-k-1})")
                outstanding = outstanding[k+1:]
            a(f"v_mfma_f32_32x32x16_bf16 {vr(GACC+16*ct,16)}, {vr(wreg(j,ct),4)}, {vr(OF[j],4)}, {vr(GACC+16*ct,16)}")
            jn = j + 2
            if jn < 10 and not (jn == 2 and ct == 0):
                f = (jn - 2) * 5 + ct - 1
                off = f * 4096
                if off >= 0x20000 and not hi_set:
                    a("v_add_u32 v0, 0x20000, v0"); hi_set = True
                base = "v0" if (off < 0x10000 or off >= 0x20000) else "v3"
                a(f"ds_read_b128 {vr(wreg(jn,ct),4)}, {base} offset:{off & 0xffff}")
                outstanding.append((jn, ct))
    if prof: a("s_memtime s[76:77]")
    a("s_waitcnt lgkmcnt(0)")
    srd(a, 12, 16, S * D * 2)
    srd(a, 28, 18, S * D * 2)
    a(f"""
    v_and_b32 v4, 31, v1
    v_mul_u32_u24 v4, 1280, v4
    v_lshrrev_b32 v5, 5, v1
    v_mul_u32_u24 v5, 160, v5
    v_add_u32 v4, v4, v5
    s_mul_i32 s26, s20, {32*1280}
    s_mul_i32 s27, s21, 320
    s_add_u32 s26, s26, s27
    s_mul_i32 s27, s7, 40
    s_add_u32 s26, s26, s27
    buffer_load_dwordx4 {vr(GFB,4)}, v4, s[12:15], s26 offen
    buffer_load_dwordx4 {vr(GFB+4,4)}, v4, s[12:15], s26 offen offset:16
    buffer_load_dwordx2 {vr(GFB+8,2)}, v4, s[12:15], s26 offen offset:32
    s_mul_i32 s27, s7, 5120
    v_add_u32 v6, s27, v2
    s_mul_i32 s27, s7, 20480
    v_add_u32 v7, s27, v2
    v_add_u32 v5, 40960, v6
    s_barrier
    """)
    if prof: a("s_memtime s[78:79]")
    for rg in range(4):
        for ct in range(5):
            a(f"ds_write_b128 v{6 if rg < 2 else 5}, {vr(GACC+16*ct+4*rg,4)} offset:{(rg&1)*20480 + ct*1024}")
    a("s_waitcnt lgkmcnt(0)")
    a("s_barrier")
    for g in range(4):
        for ct in range(5):
            a(f"ds_read_b128 {vr(GACC+20*g+4*ct,4)}, v7 offset:{g*5120 + ct*1024}")
        if g == 1: a("s_waitcnt lgkmcnt(0)")
    for i in range(10):
        a(f"v_pk_add_f32 {vr(GACC+2*i,2)}, {vr(GACC+2*i,2)}, {vr(GACC+20+2*i,2)}")
    a("s_waitcnt vmcnt(0)")
    for i in range(10):
        a(f"v_lshlrev_b32 v{GACC+20+2*i}, 16, v{GFB+i}")
        a(f"v_and_b32 v{GACC+21+2*i}, 0xffff0000, v{GFB+i}")
    for i in range(10):
        a(f"v_pk_add_f32 {vr(GACC+2*i,2)}, {vr(GACC+2*i,2)}, {vr(GACC+20+2*i,2)}")
    a("s_waitcnt lgkmcnt(0)")
    for g in (2, 3):
        for i in range(10):
            a(f"v_pk_add_f32 {vr(GACC+2*i,2)}, {vr(GACC+2*i,2)}, {vr(GACC+20*g+2*i,2)}")
    for i in range(10):
        a(f"v_cvt_pk_bf16_f32 v{GFB+i}, v{GACC+2*i}, v{GACC+2*i+1}")
    a(f"""
    buffer_store_dwordx4 {vr(GFB,4)}, v4, s[28:31], s26 offen
    buffer_store_dwordx4 {vr(GFB+4,4)}, v4, s[28:31], s26 offen offset:16
    buffer_store_dwordx2 {vr(GFB+8,2)}, v4, s[28:31], s26 offen offset:32
    """)
    if prof:
        a("""
        s_mov_b32 s70, s100
        s_mov_b32 s72, s96
        """)
        pf = Prof(a, True, 70, 2, 12); pf.n = 5
        pf.dump(vtmp=120)
    a("s_endpgm")

def gen_fallback(a):
    a.label("L_at_fallback")
    a(f"""
    s_mov_b32 s19, {WS_KV}
    s_mov_b32 s24, 0
    v_mov_b32 v2, 0xff800000
    """)
    a.label("L_at_fb_loop")
    a(f"""
    buffer_load_dwordx4 {vr(K0A,4)}, v{G_KA}, s[8:11], s19 offen
    buffer_load_dwordx2 {vr(K0B,2)}, v{G_KB}, s[8:11], s19 offen
    s_waitcnt vmcnt(0)
    v_mfma_f32_32x32x16_bf16 {vr(SB[0],16)}, {vr(K0A,4)}, {vr(Q1,4)}, 0
    v_mfma_f32_32x32x8_bf16 {vr(SB[0],16)}, {vr(K0B,2)}, {vr(Q2,2)}, {vr(SB[0],16)}
    s_nop 15
    """)
    for i in range(0, 16, 2):
        a(f"v_max3_f32 v2, v{SB[0]+i}, v{SB[0]+i+1}, v2")
    a(f"""
    s_add_u32 s19, s19, {REC}
    s_add_u32 s24, s24, 1
    s_cmp_lt_u32 s24, 64
    s_cbranch_scc1 L_at_fb_loop
    v_mov_b32 v3, v2
    s_nop 1
    v_permlane32_swap_b32 v3, v2
    s_nop 1
    v_max_f32 v2, v2, v3
    v_sub_f32 v{CM}, 0, v2
    """)
    for i in range(1, 16):
        a(f"v_mov_b32 v{CM+i}, v{CM}")
    for i in range(16):
        a(f"v_mov_b32 v{O+i}, 0")
    g = GB[0]; s = SB[0]
    a(f"""
    s_mov_b32 s19, {WS_KV}
    s_mov_b32 s24, 0
    """)
    a.label("L_at_fb_loop2")
    a(f"""
    s_add_u32 s20, s19, {REC}
    s_add_u32 s21, s19, {2*REC}
    buffer_load_dwordx4 {vr(K0A,4)}, v{G_KA}, s[8:11], s19 offen
    buffer_load_dwordx2 {vr(K0B,2)}, v{G_KB}, s[8:11], s19 offen
    buffer_load_dwordx4 {vr(g['va'],4)}, v{G_V}, s[8:11], s20 offen offset:{R_VA}
    buffer_load_dwordx4 {vr(g['vb'],4)}, v{G_V}, s[8:11], s21 offen
    s_waitcnt vmcnt(0)
    v_mfma_f32_32x32x16_bf16 {vr(s,16)}, {vr(K0A,4)}, {vr(Q1,4)}, {vr(CM,16)}
    v_mfma_f32_32x32x8_bf16 {vr(s,16)}, {vr(K0B,2)}, {vr(Q2,2)}, {vr(s,16)}
    s_nop 15
    """)
    for i in range(16): a(f"v_exp_f32 v{s+i}, v{s+i}")
    a("s_nop 0")
    for i in range(8): a(f"v_cvt_pk_bf16_f32 v{P+i}, v{s+2*i}, v{s+2*i+1}")
    a(f"""
    s_nop 1
    v_mfma_f32_32x32x16_bf16 {vr(O,16)}, {vr(g['va'],4)}, {vr(P,4)}, {vr(O,16)}
    v_mfma_f32_32x32x16_bf16 {vr(O,16)}, {vr(g['vb'],4)}, {vr(P+4,4)}, {vr(O,16)}
    s_add_u32 s19, s19, {REC}
    s_add_u32 s24, s24, 1
    s_cmp_lt_u32 s24, 64
    s_nop 15
    s_cbranch_scc1 L_at_fb_loop2
    s_branch L_at_fin
    """)
```

```python
from asmlib import *
from layout import *
import math, struct

def f32bits(x): return struct.unpack("<I", struct.pack("<f", x))[0]

XA = 4
WA = 8
DA = 14
DS = 24
XV = 29
XV2 = 13
XF = 14
WF = [44, 64]
SUM, SQ, ONES = 84, 85, 86
L16 = 30
ACC = 88
CS = 88
NV = 168
STAGE = 36864
XCH = 4 * STAGE
XCH2 = XCH + 5 * 1024
LDS_PRE = XCH2 + 4 * 1024
import os
ROT = os.environ.get('NOROT') is None
LEAD = int(os.environ.get('LEAD', '2'))
STF = os.environ.get('STF', '')
assert LEAD <= 2
PX = os.environ.get('PX', '')
PACE = int(os.environ.get('PACE', '2'))
QSCALE = DH ** -0.5 * math.log2(math.e)

def quadmap(kind, u):
    if kind == "H": return [8 * u + g for g in range(8)]
    if kind == "Q":
        if u < 4: return [5 * (2 * u + (g >> 2)) + 2 * (g & 1) + ((g >> 1) & 1) for g in range(8)]
        return [5 * (4 * (g & 1) + (g >> 1)) + 4 for g in range(8)]
    if kind == "K": return [24, 26, 25, 27, 29, 24, 24, 24]
    if kind == "V": return [32, 35, 33, 37, 34, 32, 32, 32]

def issue_chunk(a):
    a("s_lshl_b32 s38, s39, 7")
    a("s_add_u32 s38, s38, s42")
    for j in range(5):
        a(f"v_mad_u64_u32 {vr(52+2*j,2)}, s[64:65], v{DS+j}, s39, {vr(DA+2*j,2)}")
    for i in range(4):
        a(f"s_add_u32 m0, s40, {i*1024}" if i else "s_mov_b32 m0, s40")
        a(f"s_add_u32 s43, s38, {i*8*1280}" if i else "s_mov_b32 s43, s38")
        a(f"buffer_load_dwordx4 v{XV2 if i & 1 else XV}, s[8:11], s43 offen lds")
    for j in range(5):
        a(f"s_add_u32 m0, s41, {j*4096}" if j else "s_mov_b32 m0, s41")
        a("s_nop 0")
        a(f"global_load_lds_dwordx4 {vr(52+2*j,2)}, off")
    a(f"""
    s_add_u32 s39, s39, 1
    s_cmp_eq_u32 s39, 10
    s_cselect_b32 s39, 0, s39
    s_add_u32 s40, s40, {STAGE}
    s_add_u32 s41, s41, {STAGE}
    s_cmp_ge_u32 s40, {4*STAGE}
    s_cselect_b32 s43, {4*STAGE}, 0
    s_sub_u32 s40, s40, s43
    s_sub_u32 s41, s41, s43
    """)

def advance_slot(a, x=True):
    a(f"""
    s_add_u32 s34, s34, {STAGE}
    s_cmp_ge_u32 s34, {4*STAGE}
    s_mov_b32 s35, {STAGE}
    s_cselect_b32 s35, {(-3*STAGE) & 0xffffffff:#x}, s35
    s_cselect_b32 s34, 0, s34
    """)
    for r in (list(range(XA, XA + 4)) if x else []) + list(range(WA, WA + 5)):
        a(f"v_add_u32 v{r}, s35, v{r}")

def read_list(ks, buf):
    L = [f"ds_read_b128 {vr(XF+4*ks,4)}, v{XA+ks}"]
    for u in range(5):
        for n in range(2):
            L.append(f"ds_read_b64_tr_b16 {vr(WF[buf]+4*u+2*n,2)}, v{WA+u} offset:{(16*ks+4*n)*320}")
    return L

def bf16_round(a, dst, src):
    a(f"v_cvt_pk_bf16_f32 v{dst}, v{src}, v{src}")
    a(f"v_and_b32 v{dst}, 0xffff0000, v{dst}")

def gen_pre(a, name, prof=False):
    kernel_head(a, name)
    pf = Prof(a, prof, 70, 0, 4)
    pf.start()
    a(f"""
    s_cmp_ge_u32 s2, 256
    s_cbranch_scc1 L_pr_end
    s_load_dwordx8 s[44:51], s[0:1], 0
    s_load_dwordx2 s[52:53], s[0:1], {KA_WO}
    s_load_dwordx4 s[56:59], s[0:1], {KA_W1}     ; w1, w2
    s_load_dwordx2 s[4:5], s[0:1], {KA_WS}
    v_and_b32 v1, 63, v0                    ; lane
    v_lshrrev_b32 v2, 6, v0
    v_lshlrev_b32 v{L16}, 4, v1
    v_readfirstlane_b32 s7, v2
    s_and_b32 s20, s2, 7                    ; xcd
    s_and_b32 s6, s7, 3
    s_lshr_b32 s7, s7, 2
    s_lshr_b32 s21, s2, 3                   ; slot
    s_cmp_ge_u32 s21, 28
    s_cbranch_scc1 L_pr_relayout
    s_lshr_b32 s22, s20, 1
    s_lshl_b32 s22, s22, 2
    s_and_b32 s23, s21, 3
    s_add_u32 s22, s22, s23                 ; mt
    s_and_b32 s23, s20, 1
    s_mul_i32 s23, s23, 7
    s_lshr_b32 s24, s21, 2
    s_add_u32 s23, s23, s24                 ; ng
    s_lshl_b32 s25, s22, 2
    s_add_u32 s25, s25, s6
    s_cmp_lt_u32 s7, 2
    s_cbranch_scc1 L_pr_cwave
    s_and_b32 s39, s21, 3
    s_mul_i32 s39, s39, {3 if ROT else 0}
    s_add_u32 s39, s39, {'s24' if ROT else 0}
    s_sub_u32 s38, s39, 10
    s_cselect_b32 s39, s39, s38
    v_lshrrev_b32 v2, 3, v1
    v_mul_u32_u24 v2, 1280, v2
    v_lshrrev_b32 v3, 4, v1
    v_and_b32 v32, 7, v1
    v_xor_b32 v33, v32, v3
    v_lshl_add_u32 v{XV}, v33, 4, v2
    v_xor_b32 v33, 4, v33
    v_lshl_add_u32 v{XV2}, v33, 4, v2
    s_mul_i32 s42, s25, {32*1280}           ; x soffset
    s_lshl_b32 s40, s6, 12
    s_lshl_b32 s41, s6, 10
    s_add_u32 s41, s41, 16384
    s_cmp_lt_u32 s23, 4
    s_mov_b32 s26, 3072
    s_cselect_b32 s26, 1280, s26            ; pitch
    s_sub_u32 s27, s23, 4
    s_cselect_b32 s27, s23, s27
    s_mul_i32 s27, s27, 320
    s_lshl_b32 s30, s6, 6
    s_lshl_b32 s31, s26, 6
    """)
    for j in range(5):
        a(f"""
        v_add_u32 v32, s30, v1
        v_add_u32 v32, {j*256}, v32
        v_mul_u32_u24 v33, 3277, v32
        v_lshrrev_b32 v{34+j}, 16, v33
        v_mul_u32_u24 v33, 20, v{34+j}
        v_sub_u32 v{40+j}, v32, v33
        v_mul_u32_u24 v33, s26, v{34+j}
        v_lshl_add_u32 v{46+j}, v{40+j}, 4, v33
        v_mov_b32 v{DS+j}, s31
        """)
    a("s_waitcnt lgkmcnt(0)")
    srd(a, 8, 44, S * D * 2)
    a(f"""
    s_cmp_lt_u32 s23, 4
    s_cselect_b32 s28, s46, s56
    s_cselect_b32 s29, s47, s57
    s_add_u32 s28, s28, s27
    s_addc_u32 s29, s29, 0
    """)
    for j in range(5):
        a(f"""
        v_add_co_u32 v{DA+2*j}, vcc, s28, v{46+j}
        v_mov_b32 v{DA+2*j+1}, s29
        s_nop 0
        v_addc_co_u32 v{DA+2*j+1}, vcc, 0, v{DA+2*j+1}, vcc
        """)
    a(f"""
    s_cmp_lg_u32 s23, 13
    s_cbranch_scc1 L_pr_addr_done
    """)
    for j in range(5):
        a(f"""
        v_cmp_le_u32 vcc, 12, v{40+j}
        s_and_saveexec_b64 s[60:61], vcc
        v_and_b32 v32, 3, v{40+j}
        v_lshlrev_b32 v32, 3, v32
        s_mov_b32 s62, 0x00181000
        v_lshrrev_b32 v32, v32, s62
        v_and_b32 v32, 0xff, v32
        v_mul_u32_u24 v33, 40, v{34+j}
        v_add_u32 v32, v32, v33
        v_mov_b32 v{DA+2*j}, s48
        v_mov_b32 v{DA+2*j+1}, s49
        v_mov_b32 v{DS+j}, {64*40}
        v_cmp_le_u32 vcc, 16, v{40+j}
        s_and_saveexec_b64 s[62:63], vcc
        v_mov_b32 v{DA+2*j}, s50
        v_mov_b32 v{DA+2*j+1}, s51
        s_mov_b64 exec, s[62:63]
        v_add_co_u32 v{DA+2*j}, vcc, v{DA+2*j}, v32
        s_nop 1
        v_addc_co_u32 v{DA+2*j+1}, vcc, 0, v{DA+2*j+1}, vcc
        s_mov_b64 exec, s[60:61]
        """)
    a.label("L_pr_addr_done")
    a("s_mov_b32 s33, 0")
    a("s_setprio 3")
    a.label("L_pr_fill")
    issue_chunk(a)
    a(f"""
    s_add_u32 s33, s33, 1
    s_cmp_lt_u32 s33, {LEAD}
    s_cbranch_scc1 L_pr_fill
    """)
    if prof: a("s_mov_b32 s90, 1\ns_mov_b32 s91, 1\ns_mov_b32 s92, 1")
    a.label("L_pr_lloop")
    if prof: a("s_memtime s[80:81]")
    a(f"s_waitcnt vmcnt({9*(LEAD-1)})")
    if prof: a("s_memtime s[82:83]")
    a("s_barrier")
    if prof: a("s_memtime s[84:85]")
    issue_chunk(a)
    if prof: a("""
    s_memtime s[86:87]
    s_waitcnt lgkmcnt(0)
    s_sub_u32 s88, s86, s84
    s_add_u32 s90, s90, s88
    s_sub_u32 s88, s82, s80
    s_add_u32 s91, s91, s88
    s_sub_u32 s88, s84, s82
    s_add_u32 s92, s92, s88
    """)
    a(f"""
    s_add_u32 s33, s33, 1
    s_cmp_lt_u32 s33, 10
    s_cbranch_scc1 L_pr_lloop
    """)
    for i in range(LEAD):
        a(f"s_waitcnt vmcnt({9*(LEAD-1-i)})")
        a("s_barrier")
    if prof:
        a("""
        s_add_u32 s74, s72, s90
        s_add_u32 s76, s72, s91
        s_add_u32 s6, s6, 8
        """)
        pf.dump(n=4, vtmp=32)
    a("s_endpgm")
    a.label("L_pr_cwave")
    a(f"""
    v_and_b32 v2, 31, v1
    v_lshrrev_b32 v3, 5, v1
    v_bfe_u32 v32, v1, 1, 3
    v_xor_b32 v32, v32, v3
    s_lshl_b32 s30, s6, 12
    v_lshlrev_b32 v33, 7, v2
    v_add_u32 v33, s30, v33
    """)
    for ks in range(4):
        a(f"v_xor_b32 v34, {2*ks}, v32")
        a(f"v_lshl_add_u32 v{XA+ks}, v34, 4, v33")
    a(f"""
    v_bfe_u32 v32, v1, 2, 2
    v_lshl_add_u32 v32, v3, 3, v32
    v_mul_u32_u24 v32, 320, v32
    v_add_u32 v32, 16384, v32
    v_bfe_u32 v33, v1, 4, 1
    v_and_b32 v34, 3, v1
    v_lshl_add_u32 v33, v33, 2, v34
    v_or_b32 v33, 0x0c0c0c00, v33
    """)
    for u in range(5):
        qlo, qhi = pack_bytes(quadmap("Q", u))
        hlo, hhi = pack_bytes(quadmap("H", u))
        a(f"""
        s_mov_b32 s30, {hlo:#x}
        s_mov_b32 s31, {hhi:#x}
        s_cmp_lt_u32 s23, 4
        s_cselect_b32 s30, {qlo:#x}, s30
        s_cselect_b32 s31, {qhi:#x}, s31
        """)
        if u >= 3:
            mlo, mhi = pack_bytes(quadmap("K" if u == 3 else "V", u))
            a(f"""
            s_cmp_eq_u32 s23, 13
            s_cselect_b32 s30, {mlo:#x}, s30
            s_cselect_b32 s31, {mhi:#x}, s31
            """)
        a(f"""
        v_mov_b32 v34, s30
        v_perm_b32 v34, s31, v34, v33
        v_lshl_add_u32 v{WA+u}, v34, 3, v32
        """)
    a(f"""
    s_mov_b32 s33, 0                        ; chunk
    s_mov_b32 s34, 0
    s_cmp_eq_u32 s7, 1
    s_cbranch_scc1 L_pr_swave
    """)
    for i in range(80): a(f"v_mov_b32 v{ACC+i}, 0")
    a(f"v_mov_b32 v{SUM}, 0")
    a(f"v_mov_b32 v{SQ}, 0")
    a(f"v_mov_b32 v{ONES}, 0x3f803f80")
    a("s_waitcnt lgkmcnt(0)")
    srd(a, 12, 4, WS_SIZE)
    pf.stamp()
    a("s_barrier")
    pf.stamp()
    a("s_waitcnt lgkmcnt(0)")
    for r in read_list(0, 0): a(r)
    a.lines.append(".p2align 6")
    a.label("L_pr_loop")
    for ks in range(4):
        b = ks & 1
        if ks == 3:
            for i in range(16 if 'nodot' not in PX else 0):
                if i == 12: a("s_waitcnt lgkmcnt(10)")
                a(f"v_dot2c_f32_bf16 v{SUM}, v{XF+i}, v{ONES}")
                a(f"v_dot2c_f32_bf16 v{SQ}, v{XF+i}, v{XF+i}")
            advance_slot(a)
            a("s_cmp_eq_u32 s33, 9")
            a("s_cbranch_scc1 L_pr_nobar")
            a("s_barrier")
            a.label("L_pr_nobar")
        rl = read_list((ks + 1) & 3, b ^ 1)
        per = [3, 2, 2, 2, 2]
        for u in range(5):
            a(f"s_waitcnt lgkmcnt({8 if u == 0 else 9})")
            a(f"v_mfma_f32_32x32x16_bf16 {vr(ACC+16*u,16)}, {vr(WF[b]+4*u,4)}, {vr(XF+4*ks,4)}, {vr(ACC+16*u,16)}")
            for _ in range(per[u]): a(rl.pop(0))
    a(f"""
    s_add_u32 s33, s33, 1
    s_cmp_lt_u32 s33, 10
    s_cbranch_scc1 L_pr_loop
    """)
    a.label("L_pr_epi")
    pf.stamp()
    a(f"""
    v_add_u32 v33, {XCH}, v{L16}
    v_mov_b32 v34, v{SUM}
    v_mov_b32 v35, v{SQ}
    s_nop 1
    v_permlane32_swap_b32 v34, v{SUM}
    v_permlane32_swap_b32 v35, v{SQ}
    s_nop 1
    v_add_f32 v34, v34, v{SUM}
    v_add_f32 v35, v35, v{SQ}
    v_mul_f32 v34, {f32bits(1.0/D):#x}, v34        ; mean
    v_mul_f32 v35, {f32bits(1.0/D):#x}, v35
    v_fma_f32 v35, -v34, v34, v35                  ; var
    v_max_f32 v35, 0, v35
    """)
    bf16_round(a, 35, 35)
    a(f"v_add_f32 v35, {f32bits(1e-5):#x}, v35")
    bf16_round(a, 35, 35)
    a("v_sqrt_f32 v35, v35")
    a("s_nop 0")
    bf16_round(a, 37, 35)
    a(f"""
    v_rcp_f32 v36, v37                             ; rstd
    v_sub_f32 v34, 0, v34
    v_cvt_pk_bf16_f32 v38, v34, v34
    v_mov_b32 v39, 0
    s_waitcnt lgkmcnt(0)
    s_barrier
    """)
    for u in range(5):
        a(f"ds_read_b128 {vr(48+4*u,4)}, v33 offset:{u*1024}")
    for u in range(5):
        r = 48 + 4 * u
        a(f"""
        s_waitcnt lgkmcnt({4-u})
        v_add_f32 v{r}, v{r}, v{r+1}
        v_add_f32 v{r+2}, v{r+2}, v{r+3}
        v_add_f32 v{r}, v{r}, v{r+2}
        v_cvt_pk_bf16_f32 v{r+1}, v{r}, v{r}
        v_and_b32 v{r+1}, 0xffff0000, v{r+1}
        v_sub_f32 v{r+1}, v{r}, v{r+1}
        v_cvt_pk_bf16_f32 v{r+2}, v{r}, v{r+1}
        v_mov_b32 v{r+3}, 0
        s_nop 1
        v_mfma_f32_32x32x8_bf16 {vr(ACC+16*u,16)}, {vr(r+2,2)}, v[38:39], {vr(ACC+16*u,16)}
        """)
    a(f"""
    s_cmp_ge_u32 s23, 4
    s_cbranch_scc1 L_pr_epi_h
    ; ---- Q group
    s_lshl_b32 s30, s25, 2
    s_add_u32 s30, s30, s23
    s_mul_i32 s30, s30, 10240
    s_add_u32 s30, s30, {WS_Q}
    v_mul_f32 v36, {f32bits(QSCALE):#x}, v36
    v_mov_b32 v37, v36
    s_nop 7
    """)
    for u in range(5):
        for i in range(8):
            r = ACC + 16 * u + 2 * i
            a(f"v_pk_mul_f32 {vr(r,2)}, {vr(r,2)}, v[36:37]")
        for i in range(8):
            r = ACC + 16 * u + 2 * i
            a(f"v_cvt_pk_bf16_f32 v{48+8*(u&1)+i}, v{r}, v{r+1}")
        a(f"buffer_store_dwordx4 {vr(48+8*(u&1),4)}, v{L16}, s[12:15], s30 offen{STF}")
        a(f"buffer_store_dwordx4 {vr(52+8*(u&1),4)}, v{L16}, s[12:15], s30 offen offset:1024{STF}")
        a(f"s_add_u32 s30, s30, 2048")
    if prof: a("s_waitcnt vmcnt(0)")
    pf.dump(vtmp=32)
    a("s_endpgm")
    a.label("L_pr_epi_h")
    a(f"""
    s_mul_i32 s30, s25, {NKS}
    s_sub_u32 s31, s23, 4
    s_mul_i32 s31, s31, 10
    s_add_u32 s30, s30, s31
    s_add_u32 s30, s30, 40
    s_lshl_b32 s30, s30, 10
    s_add_u32 s30, s30, {WS_AH}
    v_mul_f32 v40, {f32bits(-math.log2(math.e)):#x}, v36
    v_mov_b32 v41, v40
    v_mov_b32 v34, v37
    v_mov_b32 v35, v37
    s_nop 3
    """)
    for u in range(5):
        if u == 3:
            a("s_cmp_eq_u32 s23, 13")
            a("s_cbranch_scc1 L_pr_epi_kv")
        T = 64
        for i in range(8):
            r = ACC + 16 * u + 2 * i
            a(f"v_pk_mul_f32 {vr(T+2*i,2)}, {vr(r,2)}, v[40:41]")
        for i in range(16): a(f"v_exp_f32 v{T+i}, v{T+i}")
        for i in range(8): a(f"v_pk_fma_f32 {vr(T+2*i,2)}, {vr(T+2*i,2)}, v[34:35], v[34:35]")
        for i in range(16): a(f"v_rcp_f32 v{T+i}, v{T+i}")
        for i in range(8):
            r = ACC + 16 * u + 2 * i
            a(f"v_pk_mul_f32 {vr(T+2*i,2)}, {vr(T+2*i,2)}, {vr(r,2)}")
        for i in range(8):
            a(f"v_cvt_pk_bf16_f32 v{48+8*(u&1)+i}, v{T+2*i}, v{T+2*i+1}")
        a(f"buffer_store_dwordx4 {vr(48+8*(u&1),4)}, v{L16}, s[12:15], s30 offen{STF}")
        a(f"buffer_store_dwordx4 {vr(52+8*(u&1),4)}, v{L16}, s[12:15], s30 offen offset:1024{STF}")
        a(f"s_add_u32 s30, s30, 2048")
    if prof: a("s_waitcnt vmcnt(0)")
    pf.dump(vtmp=32)
    a("s_endpgm")
    a.label("L_pr_epi_kv")
    K, V = ACC + 48, ACC + 64
    a(f"""
    s_mul_i32 s30, s25, {REC}
    s_add_u32 s30, s30, {WS_KV}
    """)
    for i in range(12): a(f"v_mul_f32 v{K+i}, v{K+i}, v36")
    for i in range(12): a(f"v_mul_f32 v{V+i}, v{V+i}, v36")
    for i in range(6): a(f"v_cvt_pk_bf16_f32 v{64+i}, v{K+2*i}, v{K+2*i+1}")
    for i in range(6): a(f"v_cvt_pk_bf16_f32 v{72+i}, v{V+2*i}, v{V+2*i+1}")
    a(f"""
    v_mov_b32 v78, 0x3f803f80
    buffer_store_dwordx4 v[64:67], v{L16}, s[12:15], s30 offen offset:{R_KA}
    v_bfe_u32 v80, v1, 4, 1
    v_mul_u32_u24 v80, {REC - R_VA}, v80
    v_bfe_u32 v81, v1, 2, 1
    v_mul_u32_u24 v81, {21*16}, v81
    v_and_b32 v82, 3, v1
    v_bfe_u32 v83, v1, 3, 1
    v_lshl_add_u32 v82, v83, 2, v82
    v_lshlrev_b32 v82, 1, v82
    v_add3_u32 v80, v80, v81, v82
    v_lshrrev_b32 v81, 5, v1
    v_mul_u32_u24 v81, {13*16}, v81
    v_add_u32 v80, v80, v81
    s_add_u32 s31, s30, {REC + R_VA}
    """)
    for i in range(8):
        hi = "_d16_hi" if i & 1 else ""
        a(f"buffer_store_short{hi} v{72+i//2}, v80, s[12:15], s31 offen offset:{i*16}")
    a(f"""
    v_lshlrev_b32 v81, 3, v1
    s_mov_b32 exec_hi, 0
    buffer_store_dwordx2 v[68:69], v81, s[12:15], s30 offen offset:{R_KB}
    """)
    for i in range(8, 13):
        hi = "_d16_hi" if i & 1 else ""
        a(f"buffer_store_short{hi} v{72+i//2}, v80, s[12:15], s31 offen offset:{i*16}")
    a(f"""
    v_mov_b32 v84, 0
    v_dot2c_f32_bf16 v84, v68, v68
    v_dot2c_f32_bf16 v84, v69, v69
    s_mov_b32 exec_lo, 0
    s_mov_b32 exec_hi, -1
    s_nop 2
    v_mov_b32 v84, 0
    s_mov_b64 exec, -1
    v_dot2c_f32_bf16 v84, v64, v64
    v_dot2c_f32_bf16 v84, v65, v65
    v_dot2c_f32_bf16 v84, v66, v66
    v_dot2c_f32_bf16 v84, v67, v67
    s_nop 2
    v_mov_b32 v85, v84
    s_nop 1
    v_permlane32_swap_b32 v85, v84
    s_nop 1
    v_add_f32 v84, v84, v85
    s_nop 1
    v_max_f32_dpp v84, v84, v84 row_shr:1 row_mask:0xf bank_mask:0xf bound_ctrl:0
    s_nop 1
    v_max_f32_dpp v84, v84, v84 row_shr:2 row_mask:0xf bank_mask:0xf bound_ctrl:0
    s_nop 1
    v_max_f32_dpp v84, v84, v84 row_shr:4 row_mask:0xf bank_mask:0xf bound_ctrl:0
    s_nop 1
    v_max_f32_dpp v84, v84, v84 row_shr:8 row_mask:0xf bank_mask:0xf bound_ctrl:0
    s_nop 1
    v_readlane_b32 s32, v84, 15
    v_readlane_b32 s33, v84, 31
    s_nop 3
    s_max_u32 s32, s32, s33
    s_lshl_b32 s31, s25, 2
    s_add_u32 s31, s31, {WS_KMAX}
    v_mov_b32 v84, s32
    v_mov_b32 v85, 0
    s_mov_b64 exec, 1
    buffer_store_dword v84, v85, s[12:15], s31 offen
    s_lshl_b32 s31, s25, 7
    s_add_u32 s31, s31, {WS_FLAG}
    v_mov_b32 v80, 0
    v_mov_b32 v81, 0
    v_mov_b32 v82, 0
    v_mov_b32 v83, 0
    buffer_store_dwordx4 v[80:83], v85, s[12:15], s31 offen
    """)
    a.label("L_pr_end")
    a("s_endpgm")
    gen_stats(a, pf)
    gen_relayout(a, pf)
    return kernel_desc(name, NV)

def gen_stats(a, pf):
    a.label("L_pr_swave")
    a("s_setprio 2")
    a(f"s_mul_i32 s30, s6, {16*320}")
    for u in range(5): a(f"v_add_u32 v{WA+u}, s30, v{WA+u}")
    for i in range(10): a(f"v_mov_b32 v{CS+i}, 0")
    if pf.on: a("s_mov_b32 s90, 1")
    a.label("L_pr_sloop")
    a("s_barrier")
    if pf.on: a("s_memtime s[84:85]")
    W, T = 56, 76
    for u in range(5):
        for n in range(2):
            a(f"ds_read_b64_tr_b16 {vr(W+4*u+2*n,2)}, v{WA+u} offset:{4*n*320}")
    advance_slot(a, x=False)
    a("s_waitcnt lgkmcnt(0)")
    ops = []
    for i in range(4):
        for u in range(5):
            ops.append(f"v_lshlrev_b32 v{T+2*u}, 16, v{W+4*u+i}")
            ops.append(f"v_and_b32 v{T+2*u+1}, 0xffff0000, v{W+4*u+i}")
        for u in range(5):
            ops.append(f"v_add_f32 v{CS+2*u}, v{CS+2*u}, v{T+2*u}")
            ops.append(f"v_add_f32 v{CS+2*u+1}, v{CS+2*u+1}, v{T+2*u+1}")
    for i, o in enumerate(ops):
        a(o)
        if i % PACE == PACE - 1: a("s_nop 0")
    if pf.on: a("""
    s_memtime s[86:87]
    s_waitcnt lgkmcnt(0)
    s_sub_u32 s88, s86, s84
    s_add_u32 s90, s90, s88
    """)
    a(f"""
    s_add_u32 s33, s33, 1
    s_cmp_lt_u32 s33, 10
    s_cbranch_scc1 L_pr_sloop
    s_lshl_b32 s30, s6, 2
    s_add_u32 s30, s30, {XCH}
    v_add_u32 v32, s30, v{L16}
    """)
    for u in range(5):
        a(f"v_add_f32 v{CS+2*u}, v{CS+2*u}, v{CS+2*u+1}")
        a(f"ds_write_b32 v32, v{CS+2*u} offset:{u*1024}")
    a("""
    s_waitcnt lgkmcnt(0)
    s_barrier
    """)
    if pf.on:
        a("s_add_u32 s74, s72, s90\ns_add_u32 s6, s6, 4")
        pf.dump(n=3, vtmp=32)
    a("s_endpgm")

def gen_relayout(a, pf):
    a.label("L_pr_relayout")
    a(f"""
    s_cmp_lg_u32 s7, 0
    s_cbranch_scc1 L_pr_end
    s_sub_u32 s21, s21, 28
    s_lshl_b32 s21, s21, 3
    s_add_u32 s21, s21, s20                 ; job
    s_and_b32 s22, s21, 3                   ; cg
    s_lshr_b32 s23, s21, 2
    s_waitcnt lgkmcnt(0)
    """)
    srd(a, 12, 4, WS_SIZE)
    a(f"""
    s_cmp_lt_u32 s23, 6
    s_cselect_b32 s8, s58, s52
    s_cselect_b32 s9, s59, s53
    s_mov_b32 s10, {D*D*2}
    s_cselect_b32 s10, {F*D*2}, s10
    s_mov_b32 s11, 0x00020000
    s_sub_u32 s24, s23, 6
    s_mul_i32 s24, s24, {320*1280}
    s_mul_i32 s25, s23, {256*1280}
    s_cmp_lt_u32 s23, 6
    s_cselect_b32 s24, s25, s24
    s_cselect_b32 s26, 4, 5
    s_mul_i32 s25, s22, 320
    s_add_u32 s24, s24, s25
    s_lshl_b32 s30, s6, 6
    """)
    for j in range(5):
        a(f"""
        v_add_u32 v32, s30, v1
        v_add_u32 v32, {j*256}, v32
        v_mul_u32_u24 v33, 3277, v32
        v_lshrrev_b32 v34, 16, v33
        v_mul_u32_u24 v33, 20, v34
        v_sub_u32 v35, v32, v33
        v_mul_u32_u24 v33, 1280, v34
        v_lshl_add_u32 v{4+j}, v35, 4, v33
        """)
    a(f"""
    s_lshl_b32 s41, s6, 10
    s_mov_b32 s33, 0
    """)
    a.label("L_rl_fill")
    for j in range(5):
        a(f"s_add_u32 m0, s41, {j*4096}" if j else "s_mov_b32 m0, s41")
        a("s_nop 0")
        a(f"buffer_load_dwordx4 v{4+j}, s[8:11], s24 offen lds")
    cm = [5 * (4 * (g & 1) + (g >> 1)) for g in range(8)]
    lo, hi = pack_bytes(cm)
    a(f"""
    s_add_u32 s41, s41, 20480
    s_add_u32 s24, s24, {64*1280}
    s_add_u32 s33, s33, 1
    s_cmp_lt_u32 s33, s26
    s_cbranch_scc1 L_rl_fill
    v_bfe_u32 v33, v1, 4, 1
    v_and_b32 v34, 3, v1
    v_lshl_add_u32 v33, v33, 2, v34
    v_or_b32 v33, 0x0c0c0c00, v33
    v_mov_b32 v34, {lo:#x}
    v_mov_b32 v35, {hi:#x}
    v_perm_b32 v34, v35, v34, v33
    v_lshlrev_b32 v34, 3, v34               ; quad*8
    v_lshrrev_b32 v3, 5, v1                 ; half
    v_bfe_u32 v32, v1, 2, 2                 ; r
    s_mul_i32 s30, s22, {NKS}
    s_cmp_ge_u32 s23, 6
    s_cbranch_scc1 L_rl_wo
    v_lshl_add_u32 v36, v3, 2, v32
    s_lshl_b32 s31, s6, 6
    v_add_u32 v36, s31, v36
    v_mul_u32_u24 v36, 320, v36
    v_add_u32 v36, v36, v34
    v_add_u32 v37, {8*320}, v36
    s_lshl_b32 s31, s23, 4
    s_add_u32 s30, s30, s31
    s_lshl_b32 s31, s6, 2
    s_add_u32 s30, s30, s31
    s_add_u32 s30, s30, 40
    s_mul_i32 s30, s30, 5120
    s_add_u32 s30, s30, {WS_W}
    s_mov_b32 s34, {16*320}
    s_mov_b32 s35, 4
    s_mov_b32 s36, 0
    s_waitcnt vmcnt(0)
    s_barrier
    s_branch L_rl_loop
    """)
    a.label("L_rl_wo")
    a(f"""
    s_mul_i32 s31, s6, 80
    v_lshl_add_u32 v36, v3, 4, v32
    v_add_u32 v36, s31, v36
    v_mul_u32_u24 v36, 320, v36
    v_add_u32 v36, v36, v34
    v_lshlrev_b32 v37, 3, v3
    v_sub_u32 v37, v32, v37
    v_add_u32 v37, 12, v37
    v_add_u32 v37, s31, v37
    v_mul_u32_u24 v37, 320, v37
    v_add_u32 v37, v37, v34
    v_lshrrev_b32 v38, 1, v32
    v_mul_u32_u24 v38, 20, v38
    v_and_b32 v39, 1, v32
    v_add_u32 v38, v38, v39
    v_lshlrev_b32 v39, 1, v3
    v_sub_u32 v38, v38, v39
    v_add_u32 v38, 10, v38
    v_add_u32 v38, s31, v38
    v_mul_u32_u24 v38, 320, v38
    v_add_u32 v38, v38, v34
    s_sub_u32 s31, s23, 6
    s_lshl_b32 s31, s31, 2
    s_add_u32 s31, s31, s6
    s_add_u32 s37, s30, s31
    s_add_u32 s37, s37, 32
    s_mul_i32 s37, s37, 5120
    s_add_u32 s37, s37, {WS_W}
    s_lshl_b32 s31, s31, 2
    s_add_u32 s30, s30, s31
    s_mul_i32 s30, s30, 5120
    s_add_u32 s30, s30, {WS_W}
    s_mov_b32 s34, {20*320}
    s_mov_b32 s35, 4
    s_mov_b32 s36, 1
    s_waitcnt vmcnt(0)
    s_barrier
    """)
    a.label("L_rl_loop")
    for ct in range(5):
        a(f"ds_read_b64_tr_b16 {vr(48+4*ct,2)}, v36 offset:{ct*8}")
        a(f"ds_read_b64_tr_b16 {vr(50+4*ct,2)}, v37 offset:{ct*8}")
    a("s_add_u32 s31, s30, 4096")
    for ct in range(5):
        a(f"s_waitcnt lgkmcnt({8-2*ct})")
        if ct < 4: a(f"buffer_store_dwordx4 {vr(48+4*ct,4)}, v{L16}, s[12:15], s30 offen offset:{ct*1024}")
        else: a(f"buffer_store_dwordx4 {vr(48+4*ct,4)}, v{L16}, s[12:15], s31 offen")
    a(f"""
    v_add_u32 v36, s34, v36
    v_add_u32 v37, s34, v37
    s_add_u32 s30, s30, 5120
    s_sub_u32 s35, s35, 1
    s_cmp_lg_u32 s35, 0
    s_cbranch_scc1 L_rl_loop
    s_cmp_eq_u32 s36, 0
    s_cbranch_scc1 L_rl_end
    s_mov_b32 s36, 0
    s_mov_b32 s35, 1
    s_mov_b32 s30, s37
    v_mov_b32 v36, v38
    v_add_u32 v37, {40*320}, v38
    s_branch L_rl_loop
    """)
    a.label("L_rl_end")
    if pf.on: a("s_waitcnt vmcnt(0)")
    pf.dump(n=2, vtmp=32)
    a("s_endpgm")
```

```python
import sys
from asmlib import *
from layout import *
from k_pre import gen_pre, LDS_PRE
from k_attn import gen_attn
NAME = "parallel_sum__grouped_kv_mqa__dense_activation_silu__prompt"
def build(path, prof=False):
    a = Asm()
    ref = open(f"cdna_kernels/{NAME}.s.ref").read().split("\n")
    hdr = [l for l in ref if l.startswith(";") and "@launch" not in l and "Override launch" not in l and "grid=ceil" not in l]
    hdr.append(f"; @launch kernel=pre_kernel grid=(256,1,1) block=(768,1,1) lds={LDS_PRE}")
    hdr.append(f"; @launch kernel=attn_kernel grid=(256,1,1) block=(768,1,1) lds=163840")
    d = [gen_pre(a, "pre_kernel", prof=prof), gen_attn(a, "attn_kernel", prof=prof)]
    txt = "\n".join(hdr) + '\n.amdgcn_target "amdgcn-amd-amdhsa--gfx950"\n' + a.text() + '.section .rodata,"a"\n'
    for x in d: txt += ".p2align 6\n" + x
    open(path, "w").write(txt)
if __name__ == "__main__":
    build(f"cdna_kernels/{NAME}.s")
    build("prof.s", prof=True)
```

```python
S, D, H, DH, F = 2048, 640, 32, 20, 1536
NKS = 136
WS_Q    = 0x000000
QBLK = 10240
WS_AH   = 0x280000
WS_W    = 0xB00000
WS_KV   = 0xDC0000
WS_KMAX = 0xDF0000
WS_FLAG = 0xDF1000
WS_SIZE = 0xE80000
assert WS_AH + 64 * NKS * 1024 <= WS_W and WS_W + 4 * NKS * 5120 <= WS_KV
REC = 2624
R_VB, R_VA, R_KA, R_KB = 0, 672, 1344, 2368
def vpos(d):
    if d == 20: return 12
    return d + (1 if d >= 12 else 0)
PV_BASE = [0, 17, 13, 4, 10, 8, 12, 12]
ODIM = [[0, 1, 2, 3, 12, 13, 14, 15, 10, 11], [16, 17, 18, 19, 4, 5, 6, 7, 8, 9]]
SUMREG = 12
KA_X, KA_WQ, KA_WK, KA_WV, KA_WO, KA_BX, KA_W1, KA_W2, KA_OUT, KA_DBG, KA_WS = [8 * i for i in range(11)]
def pack_bytes(b):
    assert len(b) == 8
    lo = b[0] | b[1] << 8 | b[2] << 16 | b[3] << 24
    hi = b[4] | b[5] << 8 | b[6] << 16 | b[7] << 24
    return lo, hi
WS_STAT = 0xDF4000
WS_CSUM = 0xDEB000
WS_MB   = 0xE00000
MBS = 4224
EV_KV, EV_W, EV_H, EV_CLR = 1, 2, 3, 4
L_KV, L_H, L_CLR, L_W = 0, 8, 24, 88
```

```python
from asmlib import *
from layout import *
import math, struct, os

def f32bits(x): return struct.unpack("<I", struct.pack("<f", x))[0]
QSCALE = DH ** -0.5 * math.log2(math.e)
NV = 168
SPIN = 0x40000
ROT = os.environ.get('ROT') is not None
PREF = os.environ.get('PREF', '')

XA = 4
WA = 8
XF = 14
L16 = 30
CSA = 31
STV = 36
CSP = [84, 86, 40, 42, 2]
WF = [44, 64]
ACC = 88
STAGE = 36864
LEAD = int(os.environ.get('LEAD', '2'))
STCH = int(os.environ.get('STCH', '9'))
CNT = 163584
C_P32, C_P48, C_REL, C_KVA, C_KVC, C_PUB, C_KMAX = 0, 4, 8, 12, 16, 20, 24
C_KVB, C_CS, C_CLRO, C_QOK, C_RING, C_QLD, C_FF, C_KVF = 32, 36, 40, 44, 48, 52, 56, 60

def quadmap(kind, u):
    if kind == "H": return [8 * u + g for g in range(8)]
    if u < 4: return [5 * (2 * u + (g >> 2)) + 2 * (g & 1) + ((g >> 1) & 1) for g in range(8)]
    return [5 * (4 * (g & 1) + (g >> 1)) + 4 for g in range(8)]

def bf16_round(a, dst, src):
    a(f"v_cvt_pk_bf16_f32 v{dst}, v{src}, v{src}")
    a(f"v_and_b32 v{dst}, 0xffff0000, v{dst}")

def issue_chunk(a):
    a("""
    s_lshl_b32 s38, s39, 7
    s_add_u32 s38, s38, s42
    s_mul_i32 s37, s39, s31
    """)
    for i in range(4):
        a(f"s_add_u32 m0, s40, {i*1024}" if i else "s_mov_b32 m0, s40")
        a(f"s_add_u32 s43, s38, {i*8*1280}" if i else "s_mov_b32 s43, s38")
        a(f"buffer_load_dwordx4 v{5 if i & 1 else 4}, s[12:15], s43 offen lds")
    for j in range(5):
        a(f"s_add_u32 m0, s41, {j*4096}" if j else "s_mov_b32 m0, s41")
        a("s_nop 0")
        a(f"buffer_load_dwordx4 v{6+j}, s[24:27], s37 offen lds")
    a(f"""
    s_add_u32 s39, s39, 1
    s_cmp_eq_u32 s39, 10
    s_cselect_b32 s39, 0, s39
    s_add_u32 s40, s40, {STAGE}
    s_add_u32 s41, s41, {STAGE}
    s_cmp_ge_u32 s40, {4*STAGE}
    s_cselect_b32 s43, {4*STAGE}, 0
    s_sub_u32 s40, s40, s43
    s_sub_u32 s41, s41, s43
    """)

def read_list(ks, buf):
    L = [f"ds_read_b128 {vr(XF+4*ks,4)}, v{XA+ks}"]
    for u in range(5):
        for n in range(2):
            L.append(f"ds_read_b64_tr_b16 {vr(WF[buf]+4*u+2*n,2)}, v{WA+u} offset:{(16*ks+4*n)*320}")
    return L

def piece_addr(a, j, nw, rowreg, piecereg):
    a(f"""
    v_add_u32 v32, s30, v1
    v_add_u32 v32, {j*64*nw}, v32
    v_mul_u32_u24 v33, 3277, v32
    v_lshrrev_b32 v{rowreg}, 16, v33
    v_mul_u32_u24 v33, 20, v{rowreg}
    v_sub_u32 v{piecereg}, v32, v33
    """)

C_PUB2 = 28
C_QL2 = 64

def get_tag(a, lbl, vz, vt):
    a("s_mov_b32 s28, 0")
    a.label(lbl)
    a(f"""
    buffer_load_dword v{vt}, v{vz}, s[16:19], 0 offen sc1
    s_add_u32 s28, s28, 1
    s_waitcnt vmcnt(0)
    v_readfirstlane_b32 s64, v{vt}
    s_cmp_lg_u32 s64, 0
    s_cbranch_scc1 {lbl}_ok
    s_sleep 2
    s_cmp_lt_u32 s28, {SPIN}
    s_cbranch_scc1 {lbl}
    """)
    a.label(lbl + "_ok")

def publish(a, soff, nl, vt, vlane="v1"):
    a(f"""
    v_mul_u32_u24 v{vt}, {MBS}, {vlane}
    v_mov_b32 v{vt+1}, s64
    s_mov_b32 exec_lo, {(1 << nl) - 1 if isinstance(nl, int) else nl}
    s_mov_b32 exec_hi, 0
    buffer_store_dword v{vt+1}, v{vt}, s[8:11], {soff} offen sc1
    s_mov_b64 exec, -1
    """)

def ev_addr(a, ev, sd):
    sh, base = {EV_H: (4, L_H), EV_CLR: (2, L_CLR), EV_KV: (5, L_KV), EV_W: (5, L_W)}[ev]
    a(f"s_lshr_b32 s{sd}, s3, {sh}")
    if ev == EV_W: a(f"s_and_b32 s31, s3, 3\ns_lshl_b32 s31, s31, 3\ns_add_u32 s{sd}, s{sd}, s31")
    a(f"s_mul_i32 s{sd}, s{sd}, {MBS}\ns_add_u32 s{sd}, s{sd}, {WS_MB + base*MBS}")

def ev_lane(a, n, vd, vlane="v1"):
    a(f"v_min_u32 v{vd}, {n-1}, {vlane}")
    a(f"v_lshlrev_b32 v{vd}, 2, v{vd}")

def ev_poll(a, ev, n, lbl, vt, sleep=2, vlane="v1"):
    if ev is None: a("s_mov_b32 s68, 0")
    else:
        ev_addr(a, ev, 68)
        ev_lane(a, n, vt + 1, vlane)
    a("s_mov_b32 s28, 0")
    a.label(lbl)
    a(f"""
    buffer_load_dword v{vt}, v{vt+1}, s[8:11], s68 offen sc1
    s_add_u32 s28, s28, 1
    s_waitcnt vmcnt(0)
    v_cmp_ne_u32 vcc, s64, v{vt}
    s_cbranch_vccz {lbl}_ok
    s_sleep {sleep}
    s_cmp_lt_u32 s28, {SPIN}
    s_cbranch_scc1 {lbl}
    """)
    a.label(lbl + "_ok")

def publish_clr_o(a, vlane="v1"):
    a(f"""
    s_lshr_b32 s30, s3, 2
    s_mul_i32 s30, s30, {MBS}
    s_and_b32 s31, s3, 3
    s_lshl_b32 s31, s31, 2
    s_add_u32 s30, s30, s31
    s_add_u32 s30, s30, {WS_MB + L_CLR*MBS}
    """)
    publish(a, "s30", 1, 44, vlane)

def publish_xcc(a):
    ev_addr(a, EV_CLR, 30)
    a(f"""
    s_and_b32 s31, s3, 3
    s_lshl_b32 s31, s31, 3
    s_add_u32 s30, s30, s31
    v_mov_b32 v46, s64
    v_mov_b32 v47, s54
    s_mov_b64 exec, 1
    buffer_store_dwordx2 v[46:47], off, s[8:11], s30 offset:64 sc1
    s_mov_b64 exec, -1
    """)

def two_way(a, lbl, stores):
    a(f"s_cmp_eq_u32 s55, 0\ns_cbranch_scc1 {lbl}_l")
    for x in stores: a(x + " sc1")
    a(f"s_branch {lbl}_e")
    a.label(lbl + "_l")
    for x in stores: a(x)
    a.label(lbl + "_e")

def clear_o(a):
    a(f"""
    s_lshr_b32 s30, s3, 2
    s_mul_i32 s30, s30, {NKS}
    s_and_b32 s31, s3, 3
    s_lshl_b32 s32, s31, 3
    s_add_u32 s32, s32, s30
    s_lshl_b32 s33, s6, 1
    s_add_u32 s32, s32, s33
    s_lshl_b32 s32, s32, 10
    s_add_u32 s32, s32, {WS_AH}
    buffer_store_dwordx4 v[40:43], v{L16}, s[8:11], s32 offen sc1
    buffer_store_dwordx4 v[40:43], v{L16}, s[8:11], s32 offen offset:1024 sc1
    s_lshl_b32 s32, s31, 1
    s_add_u32 s32, s32, s30
    s_and_b32 s33, s6, 1
    s_add_u32 s32, s32, s33
    s_lshl_b32 s32, s32, 10
    s_add_u32 s32, s32, {WS_AH + 32*1024}
    buffer_store_dwordx4 v[40:43], v{L16}, s[8:11], s32 offen sc1
    """)

def code_prefetch(a, lbl):
    a("s_getpc_b64 s[34:35]")
    a.label(lbl)
    a(f"""
    s_sub_u32 s34, s34, {lbl} - L_code_begin
    s_subb_u32 s35, s35, 0
    v_lshlrev_b32 v46, 7, v1
    """)
    for i in range(5):
        a(f"v_min_u32 v47, L_code_end - L_code_begin - 4, v46")
        a(f"global_load_dword v{160+i}, v47, s[34:35]")
        a("v_add_u32 v46, 8192, v46")

def input_prefetch(a):
    bufs = [(44, S*D*2), (46, D*D*2), (56, D*F*2), (48, D*DH*2), (50, D*DH*2)]
    a("""
    s_lshl_b32 s30, s2, 2
    s_add_u32 s30, s30, s6
    s_mov_b32 s31, s30
    """)
    a(f"s_mov_b32 s24, s44\ns_mov_b32 s25, s45\ns_mov_b32 s26, {bufs[0][1]}")
    first = 0
    for p, n in bufs:
        if first:
            a(f"""
            s_sub_u32 s32, s30, {first}
            s_cselect_b32 s31, s31, s32
            s_cselect_b32 s24, s24, s{p}
            s_cselect_b32 s25, s25, s{p+1}
            s_cselect_b32 s26, s26, {n}
            """)
        first += (n + 8191) // 8192
    assert first <= 1024
    a("""
    s_mov_b32 s27, 0x00020000
    s_lshl_b32 s31, s31, 13
    v_lshlrev_b32 v47, 7, v1
    buffer_load_dword v165, v47, s[24:27], s31 offen
    """)

def cs_issue(a):
    a(f"""
    s_cmp_lt_u32 s22, 10
    s_cselect_b32 s24, s46, s56
    s_cselect_b32 s25, s47, s57
    s_mov_b32 s26, {D*F*2}
    s_cselect_b32 s26, {D*D*2}, s26
    s_mov_b32 s27, 0x00020000
    s_mov_b32 s34, 3072
    s_cselect_b32 s34, 1280, s34
    s_sub_u32 s35, s22, 10
    s_cselect_b32 s35, s22, s35
    s_lshl_b32 s35, s35, 7
    s_mul_i32 s30, s6, 160
    s_mul_i32 s30, s30, s34
    s_add_u32 s30, s30, s35
    s_lshl_b32 s31, s34, 3
    v_mul_u32_u24 v4, s34, v2
    v_lshl_add_u32 v4, v3, 4, v4
    """)
    for i in range(20):
        a(f"buffer_load_dwordx4 {vr(48+4*i,4)}, v4, s[24:27], s30 offen")
        a("s_add_u32 s30, s30, s31")

def cs_accum(a, scr):
    for i in range(8): a(f"v_mov_b32 v{128+i}, 0")
    for i in range(20):
        for k in range(4):
            r = 48 + 4 * i + k
            a(f"v_lshlrev_b32 v{136+2*k}, 16, v{r}")
            a(f"v_and_b32 v{137+2*k}, 0xffff0000, v{r}")
        for k in range(4):
            a(f"v_pk_add_f32 {vr(128+2*k,2)}, {vr(128+2*k,2)}, {vr(136+2*k,2)}")
    a(f"""
    s_lshl_b32 s36, s6, 11
    s_add_u32 s36, s36, {scr}
    v_lshlrev_b32 v5, 5, v1
    v_add_u32 v5, s36, v5
    ds_write_b128 v5, v[128:131]
    ds_write_b128 v5, v[132:135] offset:16
    s_waitcnt lgkmcnt(0)
    """)

def cs_final(a, scr):
    a(f"v_lshlrev_b32 v5, 2, v1\nv_add_u32 v6, {scr}, v5")
    for k in range(32):
        a(f"ds_read_b32 v{48+k}, v6 offset:{k*256}")
        if k % 8 == 7: a("s_waitcnt lgkmcnt(4)")
    a("s_waitcnt lgkmcnt(0)")
    for stp in (16, 8, 4, 2, 1):
        for i in range(stp): a(f"v_add_f32 v{48+i}, v{48+i}, v{48+stp+i}")
    a(f"""
    v_cvt_pk_bf16_f32 v49, v48, v48
    v_and_b32 v49, 0xffff0000, v49
    v_sub_f32 v49, v48, v49
    v_cvt_pk_bf16_f32 v50, v48, v49
    v_mov_b32 v51, s64
    v_lshlrev_b32 v5, 3, v1
    s_lshl_b32 s30, s22, 9
    s_add_u32 s30, s30, {WS_CSUM}
    buffer_store_dwordx2 v[50:51], v5, s[8:11], s30 offen sc1
    """)

def cs_last(a, scr, lbl):
    a(f"""
    v_mov_b32 v6, {CNT}
    v_mov_b32 v7, 1
    s_mov_b64 exec, 1
    ds_add_rtn_u32 v8, v6, v7 offset:{C_CS}
    s_waitcnt lgkmcnt(0)
    v_readfirstlane_b32 s27, v8
    s_mov_b64 exec, -1
    s_cmp_lg_u32 s27, 3
    s_cbranch_scc1 {lbl}
    """)
    cs_final(a, scr)
    a.label(lbl)

def row_lut(kind):
    L = []
    for half in range(2):
        for j in range(8):
            if kind == "w2": L.append((j & 3) + 8 * (j >> 2) + 4 * half)
            if kind == "head": L.append(ODIM[half][j])
            if kind == "left": L.append(20 * (j >> 1) + ODIM[half][8 + (j & 1)])
    return pack_bytes(L[:8]) + pack_bytes(L[8:])
RL_LDS = 4 * STAGE
GACC = 16
GFB = 96
LOFF = R_KA
def cnt_add(a, off, va=102, vo=103):
    a(f"""
    s_mov_b64 exec, 1
    ds_add_u32 v{va}, v{vo} offset:{off}
    s_mov_b64 exec, -1
    """)

def kv_round(a):
    a(f"""
    s_mov_b32 m0, s22
    s_add_u32 s22, s22, 4096
    buffer_load_dwordx4 v{L16}, s[8:11], s23 offen sc1 lds
    s_add_u32 s23, s23, 4096
    """)

def kv_first(a):
    a(f"""
    v_mov_b32 v0, {CNT}
    v_mov_b32 v5, 1
    v_lshlrev_b32 v6, 2, v1
    s_mov_b32 s30, {WS_KMAX}
    buffer_load_dword v7, v6, s[8:11], s30 offen sc1
    """)
    for i in range(10): kv_round(a)
    a("s_waitcnt vmcnt(10)")
    for sh in (1, 2, 4, 8):
        a("s_nop 1")
        a(f"v_max_f32_dpp v7, v7, v7 row_shr:{sh} row_mask:0xf bank_mask:0xf bound_ctrl:0")
    a(f"""
    s_nop 1
    v_readlane_b32 s32, v7, 15
    v_readlane_b32 s33, v7, 31
    v_readlane_b32 s34, v7, 47
    v_readlane_b32 s35, v7, 63
    s_nop 3
    s_max_u32 s32, s32, s33
    s_max_u32 s34, s34, s35
    s_max_u32 s32, s32, s34
    v_mov_b32 v7, s32
    ds_write_b32 v0, v7 offset:{C_KMAX}
    s_waitcnt vmcnt(3) lgkmcnt(0)
    """)
    cnt_add(a, C_KVA, 0, 5)

def gen_phase_p(a, pf):
    a(f"""
    s_lshr_b32 s22, s20, 1
    s_lshl_b32 s22, s22, 2
    s_and_b32 s23, s21, 3
    s_add_u32 s22, s22, s23
    s_and_b32 s23, s20, 1
    s_mul_i32 s23, s23, 5
    s_lshr_b32 s36, s21, 2
    s_add_u32 s23, s23, s36
    s_add_u32 s23, s23, 2
    s_lshl_b32 s30, s20, 1
    s_and_b32 s31, s21, 1
    s_add_u32 s30, s30, s31
    s_lshr_b32 s31, s21, 1
    s_cmp_lt_u32 s21, 8                     ; slots 0-7: Q of the tokens whose attention runs on ids with the same id%8
    s_cselect_b32 s22, s30, s22
    s_cselect_b32 s23, s31, s23
    s_lshl_b32 s29, s22, 2
    s_add_u32 s29, s29, s6
    s_cmp_eq_u32 s7, 0
    s_cbranch_scc1 L_p_cwave
    s_cmp_eq_u32 s7, 1
    s_cbranch_scc1 L_p_idle
    s_setprio 3
    s_and_b32 s39, s21, 3
    s_mul_i32 s39, s39, {3 if ROT else 0}
    s_add_u32 s39, s39, {'s36' if ROT else 0}
    s_sub_u32 s38, s39, 10
    s_cselect_b32 s39, s39, s38
    v_lshrrev_b32 v2, 3, v1
    v_mul_u32_u24 v2, 1280, v2
    v_lshrrev_b32 v3, 4, v1
    v_and_b32 v32, 7, v1
    v_xor_b32 v33, v32, v3
    v_lshl_add_u32 v4, v33, 4, v2
    v_xor_b32 v33, 4, v33
    v_lshl_add_u32 v5, v33, 4, v2
    s_mul_i32 s42, s29, {32*1280}
    s_lshl_b32 s40, s6, 12
    s_add_u32 s40, s40, {2*STAGE}
    s_lshl_b32 s41, s6, 10
    s_add_u32 s41, s41, {16384 + 2*STAGE}
    s_cmp_lt_u32 s23, 4
    s_mov_b32 s34, 3072
    s_cselect_b32 s34, 1280, s34            ; pitch
    s_sub_u32 s35, s23, 4
    s_cselect_b32 s35, s23, s35
    s_mul_i32 s35, s35, 320
    s_lshl_b32 s30, s6, 6
    s_lshl_b32 s31, s34, 6
    s_cmp_eq_u32 s23, 13
    s_cselect_b32 s33, 12, 20
    """)
    for j in range(5):
        piece_addr(a, j, 4, 34, 35)
        a(f"""
        v_mul_u32_u24 v33, s34, v34
        v_lshl_add_u32 v33, v35, 4, v33
        v_add_u32 v33, s35, v33
        v_cmp_gt_u32 vcc, s33, v35
        v_mov_b32 v34, 0x7f000000
        s_nop 0
        v_cndmask_b32 v{6+j}, v34, v33, vcc
        """)
    a(f"""
    v_mov_b32 v32, {CNT}
    v_mov_b32 v36, 0
    v_mov_b32 v37, 0
    v_mov_b32 v38, 0
    v_mov_b32 v39, 0
    ds_write_b128 v32, v[36:39]
    ds_write_b128 v32, v[36:39] offset:16
    ds_write_b128 v32, v[36:39] offset:32
    ds_write_b128 v32, v[36:39] offset:48
    ds_write_b128 v32, v[36:39] offset:64
    s_waitcnt lgkmcnt(0)
    """)
    srd(a, 12, 44, S * D * 2)
    a(f"""
    s_cmp_lt_u32 s23, 4
    s_cselect_b32 s24, s46, s56
    s_cselect_b32 s25, s47, s57
    s_mov_b32 s26, {D*F*2}
    s_cselect_b32 s26, {D*D*2}, s26
    s_mov_b32 s27, 0x00020000
    s_mov_b32 s33, 0
    """)
    a.label("L_p_fill")
    issue_chunk(a)
    a(f"""
    s_add_u32 s33, s33, 1
    s_cmp_lt_u32 s33, {LEAD}
    s_cbranch_scc1 L_p_fill
    """)
    a.label("L_p_lloop")
    a(f"s_waitcnt vmcnt({9*(LEAD-1)})")
    a("s_barrier")
    issue_chunk(a)
    a(f"""
    s_add_u32 s33, s33, 1
    s_cmp_lt_u32 s33, 10
    s_cbranch_scc1 L_p_lloop
    """)
    common_srds(a)
    for i in range(LEAD):
        a(f"s_waitcnt vmcnt({9*(LEAD-1-i)})")
        a("s_barrier")
    a("s_mov_b32 s39, 8")
    a("s_branch L_a_start")
    a.label("L_p_idle")
    a("v_mov_b32 v44, 0")
    a("s_waitcnt lgkmcnt(0)")
    if PREF: input_prefetch(a)
    common_srds(a)
    a("""
    s_or_b32 s30, s2, s6
    s_cmp_lg_u32 s30, 0
    s_cbranch_scc1 L_p_idle1
    s_memrealtime s[64:65]
    s_waitcnt lgkmcnt(0)
    s_or_b32 s64, s64, 1
    v_mov_b32 v46, s64
    s_mov_b64 exec, 1
    buffer_store_dword v46, v44, s[16:19], 0 offen sc1
    s_mov_b64 exec, -1
    """)
    a.label("L_p_idle1")
    a("""
    s_setprio 2
    s_and_b32 s30, s21, 7
    s_or_b32 s30, s30, s6
    s_cmp_lg_u32 s30, 0
    s_cbranch_scc1 L_p_idle1b
    """)
    code_prefetch(a, "L_p_pc")
    a.label("L_p_idle1b")
    a(f"""
    s_lshr_b32 s30, s22, 1
    s_sub_u32 s31, s23, 13
    s_or_b32 s37, s30, s31
    s_add_u32 s22, s22, 32
    s_lshr_b32 s38, s2, 2
    s_mul_i32 s38, s38, 3
    s_add_u32 s38, s38, s6
    s_sub_u32 s38, s38, 1                   ; ks
    s_cmp_eq_u32 s6, 0
    s_cselect_b32 s38, 999, s38
    s_and_b32 s39, s2, 3                    ; cg
    s_cmp_lt_u32 s38, 40
    s_cselect_b32 s12, s52, s58
    s_cselect_b32 s13, s53, s59
    s_mov_b32 s14, {F*D*2}
    s_cselect_b32 s14, {D*D*2}, s14
    s_mov_b32 s15, 0x00020000
    """)
    w2, hd, lf = row_lut("w2"), row_lut("head"), row_lut("left")
    for k in range(4):
        a(f"""
        s_mov_b32 s{40+k}, {w2[k]:#x}
        s_cmp_lt_u32 s38, 40
        s_cselect_b32 s{40+k}, {lf[k]:#x}, s{40+k}
        s_cmp_lt_u32 s38, 32
        s_cselect_b32 s{40+k}, {hd[k]:#x}, s{40+k}
        """)
    a(f"""
    s_sub_u32 s34, s38, 40
    s_lshl_b32 s34, s34, 4
    s_sub_u32 s35, s38, 32
    s_mul_i32 s35, s35, 80
    s_cmp_lt_u32 s38, 40
    s_cselect_b32 s34, s35, s34
    s_mul_i32 s35, s38, 20
    s_cmp_lt_u32 s38, 32
    s_cselect_b32 s34, s35, s34
    s_mul_i32 s34, s34, 1280
    s_mul_i32 s35, s39, 320
    s_add_u32 s33, s34, s35
    v_mov_b32 v36, s40
    v_mov_b32 v37, s42
    s_mov_b32 s30, 0
    """)
    for j in range(5):
        piece_addr(a, j, 1, 34, 35)
        a(f"""
        v_and_b32 v33, 7, v34
        v_or_b32 v33, 0x0c0c0c00, v33
        v_perm_b32 v38, s41, v36, v33
        v_perm_b32 v39, s43, v37, v33
        v_cmp_lt_u32 vcc, 7, v34
        s_nop 1
        v_cndmask_b32 v38, v38, v39, vcc
        v_mul_u32_u24 v38, 1280, v38
        v_lshl_add_u32 v{8+j}, v35, 4, v38
        """)
    cm = [5 * (4 * (g & 1) + (g >> 1)) for g in range(8)]
    lo, hi = pack_bytes(cm)
    a(f"""
    s_mul_i32 s29, s6, 5120
    s_add_u32 s29, s29, {RL_LDS - 5120}
    """)
    BARN[0] = 0
    ibar(a)
    a("""
    buffer_load_dword v46, v44, s[16:19], 0 offen sc1
    s_cmp_lg_u32 s37, 0
    s_cbranch_scc1 L_p_idle2
    v_lshrrev_b32 v2, 3, v1
    v_and_b32 v3, 7, v1
    """)
    cs_issue(a)
    a.label("L_p_idle2")
    for i in range(4): ibar(a)
    a("""
    s_waitcnt vmcnt(0)
    v_readfirstlane_b32 s64, v46
    s_cmp_lg_u32 s64, 0
    s_cbranch_scc1 L_p_tag2_ok
    """)
    get_tag(a, "L_p_tag2", 44, 46)
    a("s_cmp_lg_u32 s6, 0\ns_cbranch_scc1 L_p_nox")
    publish_xcc(a)
    a.label("L_p_nox")
    a("""
    s_cmp_lg_u32 s37, 0
    s_cbranch_scc1 L_p_idle2b
    """)
    cs_accum(a, RL_LDS)
    cs_last(a, RL_LDS, "L_p_idle2b")
    a(f"""
    s_cmp_ge_u32 s38, {NKS}
    s_cbranch_scc1 L_p_norl2
    """)
    for j in range(5):
        a(f"s_add_u32 m0, s29, {j*1024}" if j else "s_mov_b32 m0, s29")
        a("s_nop 0")
        a(f"buffer_load_dwordx4 v{8+j}, s[12:15], s33 offen lds")
    a.label("L_p_norl2")
    for i in range(5): ibar(a)
    ibar_dump(a)
    a(f"""
    s_mov_b32 s67, 0
    v_mov_b32 v44, {CNT}
    v_mov_b32 v45, 1
    s_waitcnt vmcnt(0)
    """)
    cnt_add(a, C_RING, 44, 45)
    a("s_setprio 0")
    a("s_branch L_a_start")
    a.label("L_p_cwave")
    a(f"""
    v_and_b32 v2, 31, v1
    v_lshrrev_b32 v3, 5, v1
    v_bfe_u32 v40, v1, 1, 3
    v_xor_b32 v40, v40, v3
    s_lshl_b32 s30, s6, 12
    s_add_u32 s30, s30, {2*STAGE}
    v_lshlrev_b32 v41, 7, v2
    v_add_u32 v41, s30, v41
    """)
    for ks in range(4):
        a(f"v_xor_b32 v42, {2*ks}, v40")
        a(f"v_lshl_add_u32 v{XA+ks}, v42, 4, v41")
    a(f"""
    v_bfe_u32 v40, v1, 2, 2
    v_lshl_add_u32 v40, v3, 3, v40
    v_mul_u32_u24 v40, 320, v40
    v_add_u32 v40, {16384 + 2*STAGE}, v40
    v_bfe_u32 v41, v1, 4, 1
    v_and_b32 v42, 3, v1
    v_lshl_add_u32 v41, v41, 2, v42
    v_or_b32 v41, 0x0c0c0c00, v41
    v_lshrrev_b32 v43, 2, v2
    v_or_b32 v43, 0x0c0c0c00, v43
    v_lshlrev_b32 v44, 3, v42
    s_mul_i32 s32, s23, 1280
    s_add_u32 s32, s32, {WS_CSUM}
    v_add_u32 v44, s32, v44
    """)
    for u in range(5):
        qlo, qhi = pack_bytes(quadmap("Q", u))
        hlo, hhi = pack_bytes(quadmap("H", u))
        a(f"""
        s_mov_b32 s30, {hlo:#x}
        s_mov_b32 s31, {hhi:#x}
        s_cmp_lt_u32 s23, 4
        s_cselect_b32 s30, {qlo:#x}, s30
        s_cselect_b32 s31, {qhi:#x}, s31
        v_mov_b32 v45, s30
        v_perm_b32 v46, s31, v45, v41
        v_lshl_add_u32 v{WA+u}, v46, 3, v40
        v_perm_b32 v46, s31, v45, v43
        v_lshl_add_u32 v{CSA+u}, v46, 5, v44
        """)
    for i in range(80): a(f"v_mov_b32 v{ACC+i}, 0")
    a(f"""
    v_lshlrev_b32 v13, 4, v2                ; (l&31)*16
    s_lshl_b32 s36, s29, 9
    s_add_u32 s36, s36, {WS_STAT}
    s_mov_b32 s33, 0                        ; chunk
    s_mov_b32 s34, {2*STAGE}                ; slot*STAGE
    s_mul_i32 s37, s29, {MBS}
    s_and_b32 s31, s23, 3
    s_lshl_b32 s31, s31, 3
    s_add_u32 s37, s37, s31
    s_add_u32 s37, s37, {WS_MB + L_CLR*MBS}
    s_cmp_eq_u32 s23, 13
    s_cbranch_scc0 L_p_full
    v_mov_b32 v{CSA+3}, v{CSA}
    v_mov_b32 v{CSA+4}, v{CSA}
    """)
    a.label("L_p_full")
    a("s_waitcnt lgkmcnt(0)")
    common_srds(a)
    a("s_barrier")
    pf.stamp()
    a("s_waitcnt lgkmcnt(0)")
    for r in read_list(0, 0): a(r)
    def stat_loads():
        a(f"buffer_load_dword v0, off, s[16:19], 0 sc1")
        a(f"buffer_load_dwordx2 {vr(XF,2)}, off, s[8:11], s37 offset:64 sc1")
        a(f"buffer_load_dwordx4 {vr(STV,4)}, v13, s[8:11], s36 offen sc1")
        for u in range(5):
            a(f"buffer_load_dwordx2 {vr(CSP[u],2)}, v{CSA+u}, s[8:11], 0 offen sc1")
    a.lines.append(".p2align 6")
    a.label("L_p_loop")
    for ks in range(4):
        b = ks & 1
        if ks == 1:
            a(f"s_cmp_lg_u32 s33, {STCH}")
            a("s_cbranch_scc1 L_p_nost")
            stat_loads()
            a.label("L_p_nost")
        if ks == 3:
            a(f"""
            s_add_u32 s34, s34, {STAGE}
            s_cmp_ge_u32 s34, {4*STAGE}
            s_mov_b32 s35, {STAGE}
            s_cselect_b32 s35, {(-3*STAGE) & 0xffffffff:#x}, s35
            s_cselect_b32 s34, 0, s34
            """)
            for r in list(range(XA, XA + 4)) + list(range(WA, WA + 5)):
                a(f"v_add_u32 v{r}, s35, v{r}")
            a("s_cmp_eq_u32 s33, 9")
            a("s_cbranch_scc1 L_p_last")
            if LEAD > 2: a("s_waitcnt lgkmcnt(0)")
            a("s_barrier")
        rl = read_list((ks + 1) & 3, b ^ 1)
        per = [3, 2, 2, 2, 2]
        for u in range(5):
            a(f"s_waitcnt lgkmcnt({8 if u == 0 else 9})")
            a(f"v_mfma_f32_32x32x16_bf16 {vr(ACC+16*u,16)}, {vr(WF[b]+4*u,4)}, {vr(XF+4*ks,4)}, {vr(ACC+16*u,16)}")
            for _ in range(per[u]): a(rl.pop(0))
    a("s_add_u32 s33, s33, 1")
    a("s_branch L_p_loop")
    a.label("L_p_last")
    a(f"v_mov_b32 v44, {CNT}\nv_mov_b32 v45, 1")
    a("s_waitcnt lgkmcnt(0)")
    cnt_add(a, C_RING, 44, 45)
    for u in range(5):
        a(f"v_mfma_f32_32x32x16_bf16 {vr(ACC+16*u,16)}, {vr(WF[1]+4*u,4)}, {vr(XF+12,4)}, {vr(ACC+16*u,16)}")
    pf.stamp()
    a("s_setprio 3")
    a("s_mov_b32 s28, 0")
    a.label("L_p_stchk")
    a(f"""
    s_waitcnt vmcnt(0)
    v_readfirstlane_b32 s64, v0
    v_min_u32 v48, v{STV+3}, v{CSP[0]+1}
    v_max_u32 v49, v{STV+3}, v{CSP[0]+1}
    v_min3_u32 v48, v48, v{CSP[1]+1}, v{CSP[2]+1}
    v_max3_u32 v49, v49, v{CSP[1]+1}, v{CSP[2]+1}
    v_min3_u32 v48, v48, v{CSP[3]+1}, v{CSP[4]+1}
    v_max3_u32 v49, v49, v{CSP[3]+1}, v{CSP[4]+1}
    v_cmp_ne_u32 vcc, s64, v48
    v_cmp_ne_u32 s[30:31], s64, v49
    s_or_b64 vcc, vcc, s[30:31]
    s_cmp_eq_u32 s64, 0
    s_cselect_b32 vcc_lo, -1, vcc_lo
    s_cmp_eq_u64 vcc, 0
    s_cbranch_scc1 L_p_havest
    s_add_u32 s28, s28, 1
    s_cmp_ge_u32 s28, {SPIN}
    s_cbranch_scc1 L_p_havest
    s_sleep 2
    """)
    stat_loads()
    a("s_branch L_p_stchk")
    a.label("L_p_havest")
    st(a, 90)
    a(f"""
    v_mov_b32 v{STV+3}, 0
    s_mov_b32 exec_lo, 0
    v_mov_b32 v{STV+2}, 0
    s_mov_b64 exec, -1
    """)
    for u in range(5): a(f"v_mov_b32 v{CSP[u]+1}, 0")
    a("s_nop 1")
    for u in (4, 0, 2, 3, 1):
        a(f"v_mfma_f32_32x32x8_bf16 {vr(ACC+16*u,16)}, {vr(CSP[u],2)}, {vr(STV+2,2)}, {vr(ACC+16*u,16)}")
    a(f"""
    s_cmp_ge_u32 s23, 4
    s_cbranch_scc1 L_p_epi_h
    s_lshl_b32 s30, s29, 2
    s_add_u32 s30, s30, s23
    s_mul_i32 s30, s30, {QBLK}
    s_add_u32 s30, s30, {WS_Q}
    v_mul_f32 v86, {f32bits(QSCALE):#x}, v{STV}
    v_mov_b32 v87, v86
    """)
    a(f"""
    v_readfirstlane_b32 s32, v{XF}
    v_readfirstlane_b32 s33, v{XF+1}
    s_nop 1
    s_xor_b32 s32, s32, s64
    s_xor_b32 s33, s33, s54
    s_or_b32 s55, s32, s33
    s_mul_i32 s34, s29, {MBS}
    s_lshl_b32 s31, s23, 7
    s_add_u32 s34, s34, s31
    s_add_u32 s34, s34, {WS_MB + L_CLR*MBS + 128}
    """)
    for u in range(5):
        for i in range(8):
            r = ACC + 16 * u + 2 * i
            a(f"v_pk_mul_f32 {vr(r,2)}, {vr(r,2)}, v[86:87]")
        for i in range(8):
            r = ACC + 16 * u + 2 * i
            a(f"v_cvt_pk_bf16_f32 v{44+8*u+i}, v{r}, v{r+1}")
        two_way(a, f"L_p_qs{u}", [f"buffer_store_dwordx4 {vr(44+8*u,4)}, v{L16}, s[8:11], s30 offen",
                                  f"buffer_store_dwordx4 {vr(48+8*u,4)}, v{L16}, s[8:11], s30 offen offset:1024"])
        a(f"s_add_u32 s30, s30, 2048")
    st(a, 92)
    a(f"v_mov_b32 v42, {CNT}\nv_mov_b32 v43, 1")
    cnt_add(a, C_QLD, 42, 43)
    a("""
    v_mov_b32 v40, s64
    s_mov_b64 exec, 1
    s_waitcnt vmcnt(0)
    """)
    two_way(a, "L_p_qf", ["buffer_store_dword v40, off, s[8:11], s34"])
    a("s_mov_b64 exec, -1")
    a("s_mov_b32 s67, 0\ns_branch L_a_start")
    a.label("L_p_epi_h")
    a(f"""
    s_mul_i32 s30, s29, {NKS}
    s_sub_u32 s31, s23, 4
    s_mul_i32 s31, s31, 10
    s_add_u32 s30, s30, s31
    s_add_u32 s30, s30, 40
    s_lshl_b32 s30, s30, 10
    s_add_u32 s65, s30, {WS_AH}
    s_mov_b32 s67, 1
    s_mov_b32 s69, s23
    v_mul_f32 v40, {f32bits(-math.log2(math.e)):#x}, v{STV}
    v_mov_b32 v41, v40
    v_mov_b32 v42, v{STV+1}
    v_mov_b32 v43, v{STV+1}
    s_nop 1
    """)
    a("s_cmp_eq_u32 s23, 13")
    a("s_cbranch_scc1 L_p_h2")
    for u in (4, 3, 2, 1, 0):
        if u == 2: a.label("L_p_h2")
        T = 64
        for i in range(8):
            r = ACC + 16 * u + 2 * i
            a(f"v_pk_mul_f32 {vr(T+2*i,2)}, {vr(r,2)}, v[40:41]")
        for i in range(16): a(f"v_exp_f32 v{T+i}, v{T+i}")
        for i in range(8): a(f"v_pk_fma_f32 {vr(T+2*i,2)}, {vr(T+2*i,2)}, v[42:43], v[42:43]")
        for i in range(16): a(f"v_rcp_f32 v{T+i}, v{T+i}")
        for i in range(8):
            r = ACC + 16 * u + 2 * i
            a(f"v_pk_mul_f32 {vr(T+2*i,2)}, {vr(T+2*i,2)}, {vr(r,2)}")
        for i in range(8):
            a(f"v_cvt_pk_bf16_f32 v{128+8*u+i}, v{T+2*i}, v{T+2*i+1}")
    a("s_branch L_a_start")

BARN = [0]
def ibar(a):
    a("s_barrier")
    if PROFON[0]:
        a(f"s_memtime s[84:85]\ns_waitcnt lgkmcnt(0)\nv_mov_b32 v{144+BARN[0]}, s84")
        BARN[0] += 1
def ibar_dump(a):
    if not PROFON[0]: return
    a("""
    s_load_dwordx2 s[84:85], s[0:1], 40
    s_lshl_b32 s86, s2, 2
    s_add_u32 s86, s86, s6
    s_lshl_b32 s86, s86, 6
    s_add_u32 s86, s86, 0x40000
    v_mov_b32 v143, s86
    v_mov_b32 v155, s72
    s_waitcnt lgkmcnt(0)
    global_store_dwordx4 v143, v[144:147], s[84:85]
    global_store_dwordx4 v143, v[148:151], s[84:85] offset:16
    global_store_dwordx4 v143, v[152:155], s[84:85] offset:32
    s_nop 1
    """)
PROFON = [False]
def st(a, r):
    if PROFON[0]: a(f"s_memtime s[{r}:{r+1}]")

def common_srds(a):
    srd(a, 8, 4, WS_SIZE)
    srd(a, 16, 62, 256)

XN_W = 81920
CS_SCR = XN_W + 51200

def gen_helper_p(a, pf):
    a.label("L_h_start")
    a(f"""
    s_sub_u32 s21, s21, 28
    s_lshl_b32 s21, s21, 3
    s_add_u32 s21, s21, s20                 ; h
    v_lshrrev_b32 v2, 3, v1                 ; r
    v_and_b32 v3, 7, v1                     ; c
    s_cmp_eq_u32 s7, 2
    s_cbranch_scc1 L_h_cs
    v_mul_u32_u24 v4, 1280, v2
    v_lshl_add_u32 v4, v3, 4, v4
    s_lshl_b32 s22, s21, 3
    s_add_u32 s22, s22, s66
    s_mul_i32 s30, s22, {8*1280}
    s_waitcnt lgkmcnt(0)
    """)
    srd(a, 12, 44, S * D * 2)
    for i in range(10):
        a(f"buffer_load_dwordx4 {vr(48+4*i,4)}, v4, s[12:15], s30 offen offset:{i*128}")
    if PREF:
        a("s_cmp_lg_u32 s7, 1\ns_cbranch_scc1 L_h_nopre")
        input_prefetch(a)
        a.label("L_h_nopre")
    common_srds(a)
    a("v_mov_b32 v44, 0")
    get_tag(a, "L_h_tag0", 44, 46)
    a("s_cmp_lg_u32 s66, 4\ns_cbranch_scc1 L_h_nox")
    publish_xcc(a)
    a.label("L_h_nox")
    a.label("L_h_st")
    st(a, 74)
    a("""
    v_mov_b32 v88, 0
    v_mov_b32 v89, 0
    v_mov_b32 v90, 0x3f803f80
    """)
    for i in range(40):
        a(f"v_dot2c_f32_bf16 v88, v{48+i}, v90")
        a(f"v_dot2c_f32_bf16 v89, v{48+i}, v{48+i}")
    a("s_nop 2")
    for ctl in ("quad_perm:[1,0,3,2]", "quad_perm:[2,3,0,1]", "row_half_mirror"):
        a(f"""
        v_add_f32_dpp v88, v88, v88 {ctl} row_mask:0xf bank_mask:0xf
        v_add_f32_dpp v89, v89, v89 {ctl} row_mask:0xf bank_mask:0xf
        s_nop 1
        """)
    a(f"""
    v_mul_f32 v88, {f32bits(1.0/D):#x}, v88
    v_mul_f32 v89, {f32bits(1.0/D):#x}, v89
    v_fma_f32 v89, -v88, v88, v89
    v_max_f32 v89, 0, v89
    """)
    bf16_round(a, 89, 89)
    a(f"v_add_f32 v89, {f32bits(1e-5):#x}, v89")
    bf16_round(a, 89, 89)
    a("v_sqrt_f32 v89, v89")
    a("s_nop 0")
    bf16_round(a, 93, 89)
    a(f"""
    v_rcp_f32 v92, v93
    v_sub_f32 v88, 0, v88
    v_cvt_pk_bf16_f32 v94, v88, v88
    v_mov_b32 v95, s64
    v_lshlrev_b32 v5, 4, v2
    s_lshl_b32 s30, s22, 7
    s_add_u32 s30, s30, {WS_STAT}
    s_mov_b32 exec_lo, 0x01010101
    s_mov_b32 exec_hi, 0x01010101
    buffer_store_dwordx4 v[92:95], v5, s[8:11], s30 offen sc1
    s_mov_b64 exec, -1
    v_and_b32 v98, 0xffff0000, v94
    v_mul_f32 v98, v98, v92
    v_mov_b32 v99, v98
    v_mov_b32 v96, v92
    v_mov_b32 v97, v92
    s_lshl_b32 s30, s66, 3
    v_add_u32 v6, s30, v2
    v_bfe_u32 v7, v6, 1, 3
    v_xor_b32 v7, v7, v3
    v_lshlrev_b32 v6, 7, v6
    v_lshl_add_u32 v6, v7, 4, v6
    v_add_u32 v7, 0x10000, v6
    """)
    for i in range(10):
        for k in range(4):
            r = 48 + 4 * i + k
            t = 100 + 2 * k
            a(f"v_lshlrev_b32 v{t}, 16, v{r}")
            a(f"v_and_b32 v{t+1}, 0xffff0000, v{r}")
        for k in range(4):
            t = 100 + 2 * k
            a(f"v_pk_fma_f32 {vr(t,2)}, {vr(t,2)}, v[96:97], v[98:99]")
        for k in range(4):
            t = 100 + 2 * k
            a(f"v_cvt_pk_bf16_f32 v{48+4*i+k}, v{t}, v{t+1}")
        a(f"ds_write_b128 v{6 if i < 8 else 7}, {vr(48+4*i,4)} offset:{(i*8192) & 0xffff}")
    a("""
    s_waitcnt lgkmcnt(0)
    s_barrier                               ; B1
    """)
    st(a, 76)
    a("""
    s_cmp_eq_u32 s7, 0
    s_cbranch_scc1 L_h_kv
    s_barrier                               ; B2
    s_mov_b32 s67, 0
    s_branch L_a_start
    """)
    gen_h_colsum(a)
    gen_h_kv(a)

def gen_h_colsum(a):
    a.label("L_h_cs")
    a(f"""
    v_mov_b32 v32, {CNT}
    v_mov_b32 v36, 0
    v_mov_b32 v37, 0
    v_mov_b32 v38, 0
    v_mov_b32 v39, 0
    ds_write_b128 v32, v[36:39]
    ds_write_b128 v32, v[36:39] offset:16
    ds_write_b128 v32, v[36:39] offset:32
    ds_write_b128 v32, v[36:39] offset:48
    ds_write_b128 v32, v[36:39] offset:64
    s_mov_b32 s22, s21                      ; block
    s_cmp_lg_u32 s6, 3
    s_cbranch_scc1 L_h_nopf
    """)
    code_prefetch(a, "L_h_pc")
    a.label("L_h_nopf")
    a("s_waitcnt lgkmcnt(0)")
    common_srds(a)
    for m, p in ((0, 48), (1, 50)):
        srd(a, 12, p, D * DH * 2)
        a(f"s_lshl_b32 s30, s6, 10")
        for i in range(7):
            if i == 6:
                a("s_cmp_lg_u32 s6, 0")
                a(f"s_cbranch_scc1 L_h_dma{m}")
            a(f"s_add_u32 m0, s30, {XN_W + m*25600}")
            a("s_nop 0")
            a(f"buffer_load_dwordx4 v{L16}, s[12:15], s30 offen lds")
            a("s_add_u32 s30, s30, 4096")
        a.label(f"L_h_dma{m}")
    cs_issue(a)
    a("s_waitcnt vmcnt(20)")
    a("s_barrier                               ; B1")
    a("v_mov_b32 v44, 0")
    get_tag(a, "L_h_tag2", 44, 46)
    a("s_setprio 2")
    st(a, 90)
    cs_accum(a, CS_SCR)
    cs_last(a, CS_SCR, "L_h_csdone")
    st(a, 92)
    a("s_mov_b32 s39, 0")
    a("s_barrier                               ; B2")
    a("s_branch L_a_start")

def gen_h_kv(a):
    a.label("L_h_kv")
    a("s_setprio 3")
    a("v_mov_b32 v44, 0")
    klo, khi = pack_bytes([0, 2, 1, 3, 4, 0, 0, 0])
    vlo, vhi = pack_bytes([0, 1, 2, 3, 4, 0, 0, 0])
    a(f"""
    s_and_b32 s30, s6, 1                    ; tile
    s_lshr_b32 s31, s6, 1                   ; 0 = K, 1 = V
    s_lshl_b32 s29, s21, 1
    s_add_u32 s29, s29, s30
    v_and_b32 v2, 31, v1
    v_lshrrev_b32 v3, 5, v1
    v_bfe_u32 v40, v1, 1, 3
    v_xor_b32 v40, v40, v3
    s_lshl_b32 s30, s30, 12
    v_lshlrev_b32 v41, 7, v2
    v_add_u32 v41, s30, v41
    """)
    for ks in range(4):
        a(f"v_xor_b32 v42, {2*ks}, v40")
        a(f"v_lshl_add_u32 v{4+ks}, v42, 4, v41")
    a(f"""
    v_bfe_u32 v40, v1, 2, 2
    v_lshl_add_u32 v40, v3, 3, v40
    v_mul_u32_u24 v40, 40, v40
    s_mul_i32 s30, s31, 25600
    s_add_u32 s30, s30, {XN_W}
    v_add_u32 v40, s30, v40
    v_bfe_u32 v41, v1, 4, 1
    v_and_b32 v42, 3, v1
    v_lshl_add_u32 v41, v41, 2, v42
    v_or_b32 v41, 0x0c0c0c00, v41
    s_mov_b32 s30, {klo:#x}
    s_cmp_eq_u32 s31, 0
    s_cselect_b32 s30, s30, {vlo:#x}
    v_mov_b32 v45, s30
    v_mov_b32 v46, {khi:#x}
    v_perm_b32 v46, v46, v45, v41
    v_lshl_add_u32 v8, v46, 3, v40
    """)
    for i in range(16): a(f"v_mov_b32 v{112+i}, 0")
    def reads(buf, xoff, woff):
        B = 48 + 32 * buf
        for ks in range(4):
            a(f"ds_read_b128 {vr(B+8*ks,4)}, v{4+ks} offset:{xoff}")
            a(f"ds_read_b64_tr_b16 {vr(B+8*ks+4,2)}, v8 offset:{woff + ks*640}")
            a(f"ds_read_b64_tr_b16 {vr(B+8*ks+6,2)}, v8 offset:{woff + ks*640 + 160}")
    reads(0, 0, 0)
    a("s_mov_b32 s33, 0")
    a("s_cbranch_scc0 L_h_vloop")
    for kind in ("k", "v"):
        a.label(f"L_h_{kind}loop")
        for buf in range(2):
            a("s_waitcnt lgkmcnt(0)")
            reads(buf ^ 1, 8192 * (buf + 1), 2560 * (buf + 1))
            B = 48 + 32 * buf
            for ks in range(4):
                x, w = vr(B + 8 * ks, 4), vr(B + 8 * ks + 4, 4)
                a(f"v_mfma_f32_32x32x16_bf16 v[112:127], {w if kind == 'k' else x}, {x if kind == 'k' else w}, v[112:127]")
        for ks in range(4): a(f"v_add_u32 v{4+ks}, 16384, v{4+ks}")
        a(f"""
        v_add_u32 v8, 5120, v8
        s_add_u32 s33, s33, 1
        s_cmp_lt_u32 s33, 5
        s_cbranch_scc1 L_h_{kind}loop
        s_waitcnt lgkmcnt(0)
        s_mul_i32 s30, s29, {REC}
        s_add_u32 s30, s30, {WS_KV}
        s_nop 7
        """)
        for i in range(8): a(f"v_cvt_pk_bf16_f32 v{48+i}, v{112+2*i}, v{113+2*i}")
        if kind == "k":
            a(f"""
            buffer_store_dwordx4 v[48:51], v{L16}, s[8:11], s30 offen offset:{R_KA} sc1
            v_lshlrev_b32 v9, 3, v1
            s_mov_b32 exec_hi, 0
            buffer_store_dwordx2 v[52:53], v9, s[8:11], s30 offen offset:{R_KB} sc1
            s_mov_b32 exec_lo, 0
            s_mov_b32 exec_hi, -1
            s_nop 1
            v_mov_b32 v52, 0
            v_mov_b32 v53, 0
            s_mov_b64 exec, -1
            v_mov_b32 v60, 0
            """)
            for i in range(6): a(f"v_dot2c_f32_bf16 v60, v{48+i}, v{48+i}")
            a(f"""
            s_nop 2
            v_mov_b32 v61, v60
            s_nop 1
            v_permlane32_swap_b32 v61, v60
            s_nop 1
            v_add_f32 v60, v60, v61
            """)
            for sh in (1, 2, 4, 8):
                a("s_nop 1")
                a(f"v_max_f32_dpp v60, v60, v60 row_shr:{sh} row_mask:0xf bank_mask:0xf bound_ctrl:0")
            a(f"""
            s_nop 1
            v_readlane_b32 s32, v60, 15
            v_readlane_b32 s33, v60, 31
            s_nop 3
            s_max_u32 s32, s32, s33
            s_lshl_b32 s31, s29, 2
            s_add_u32 s31, s31, {WS_KMAX}
            v_mov_b32 v60, s32
            v_mov_b32 v44, 0
            s_mov_b64 exec, 1
            buffer_store_dword v60, v44, s[8:11], s31 offen sc1
            s_mov_b64 exec, -1
            s_branch L_h_kvpub
            """)
        else:
            a(f"""
            s_mov_b32 exec_lo, 0x100000
            s_mov_b32 exec_hi, 0x100000
            """)
            for i in range(8): a(f"v_mov_b32 v{48+i}, 0x3f803f80")
            a(f"""
            v_mov_b32 v2, 11
            s_mov_b32 exec_lo, 0x1ff000
            s_mov_b32 exec_hi, 0x1ff000
            v_add_u32 v2, 1, v2
            s_mov_b32 exec_lo, 0x1fffff
            s_mov_b32 exec_hi, 0x1fffff
            v_mul_u32_u24 v9, 21, v3
            v_add_lshl_u32 v9, v9, v2, 4
            s_add_u32 s31, s30, {2*REC}
            buffer_store_dwordx4 v[48:51], v9, s[8:11], s30 offen offset:{REC + R_VA} sc1
            buffer_store_dwordx4 v[52:55], v9, s[8:11], s31 offen sc1
            s_mov_b64 exec, -1
            """)
    a.label("L_h_kvpub")
    a("s_waitcnt vmcnt(0)")
    a(f"""
    v_mov_b32 v44, {CNT}
    v_mov_b32 v45, 1
    s_mov_b64 exec, 1
    ds_add_rtn_u32 v46, v44, v45 offset:{C_PUB2}
    s_waitcnt lgkmcnt(0)
    v_readfirstlane_b32 s27, v46
    s_mov_b64 exec, -1
    s_cmp_lg_u32 s27, 3
    s_cbranch_scc1 L_h_kvpub2
    """)
    a(f"s_lshl_b32 s30, s21, 2\ns_add_u32 s30, s30, {WS_MB + L_KV*MBS}")
    publish(a, "s30", 8, 44)
    a.label("L_h_kvpub2")
    st(a, 74)
    a("""
    s_barrier                               ; B2
    s_mov_b32 s67, 0
    s_branch L_a_start
    """)

Q1, Q2 = 4, 8
A_V, A_KA, A_KB = 10, 11, 12
G_V, G_KA, G_KB = 13, 14, 15
CM = 16
SB = [32, 48]
O = 64
P = 80
GB = [dict(vb=88, va=92, ka=96, kb=100), dict(vb=104, va=108, ka=112, kb=116)]
K0A, K0B = 120, 124
VCNT = 102
GD = {61: dict(ka=130, kb=134), 62: dict(vb=136, va=140, ka=144, kb=148), 63: dict(vb=150, va=154), 64: dict(vb=158)}
GDEPTH = 3
HS = 128
U = 8

def tile_body(a, t_par, reads, t=None):
    g = dict(GB[t_par]); gn = GB[t_par ^ 1]
    skip = set()
    if t is not None:
        g.update(GD.get(t, {}))
        skip = set(GD.get(t + 1, {}).keys())
        if t + 1 >= 63: skip |= {"ka", "kb", "va", "vb"}
    s = SB[t_par]; sn = SB[t_par ^ 1]
    last = t == 63
    def e(i): a(f"v_exp_f32 v{s+i}, v{s+i}")
    def c(i): a(f"v_cvt_pk_bf16_f32 v{P+i}, v{s+2*i}, v{s+2*i+1}")
    def rd(w):
        if w in skip: return
        if w == "ka": a(f"ds_read_b128 {vr(gn['ka'],4)}, v{A_KA} offset:{reads}")
        if w == "kb": a(f"ds_read_b64 {vr(gn['kb'],2)}, v{A_KB} offset:{reads}")
        if w == "vb": a(f"ds_read_b128 {vr(gn['vb'],4)}, v{A_V} offset:{reads}")
        if w == "va": a(f"ds_read_b128 {vr(gn['va'],4)}, v{A_V} offset:{reads+R_VA}")
    a("s_waitcnt lgkmcnt(0)")
    if t == 61:
        cnt_add(a, C_REL)
        a("s_waitcnt vmcnt(0)")
    if not last: a(f"v_mfma_f32_32x32x16_bf16 {vr(sn,16)}, {vr(g['ka'],4)}, {vr(Q1,4)}, {vr(CM,16)}")
    rd("ka"); e(0); e(1); e(2); c(0); e(3)
    a(f"v_mfma_f32_32x32x16_bf16 {vr(O,16)}, {vr(g['vb'],4)}, {vr(P+4,4)}, {vr(O,16)}")
    rd("kb"); e(4); c(1); e(5); e(6); c(2); e(7)
    if not last: a(f"v_mfma_f32_32x32x8_bf16 {vr(sn,16)}, {vr(g['kb'],2)}, {vr(Q2,2)}, {vr(sn,16)}")
    rd("vb"); e(8); c(3); e(9); e(10); c(4); e(11)
    a(f"v_mfma_f32_32x32x16_bf16 {vr(O,16)}, {vr(g['va'],4)}, {vr(P,4)}, {vr(O,16)}")
    rd("va"); e(12); c(5); e(13); e(14); e(15); c(6); c(7)

def lds_poll(a, va, vt, off, target, lbl, sleep=2):
    a.label(lbl)
    a(f"""
    ds_read_b32 v{vt}, v{va} offset:{off}
    s_waitcnt lgkmcnt(0)
    v_readfirstlane_b32 s27, v{vt}
    s_cmp_ge_u32 s27, {target}
    s_cbranch_scc1 {lbl}_ok
    s_sleep {sleep}
    s_branch {lbl}
    """)
    a.label(lbl + "_ok")

def gen_phase_a(a, pf):
    prof = pf.on
    lo, hi = pack_bytes(PV_BASE)
    a.label("L_a_start")
    if prof: a("s_memtime s[78:79]")
    a(f"""
    v_lshlrev_b32 v127, 4, v1               ; lane*16
    s_cmp_eq_u32 s7, 2
    s_cbranch_scc1 L_a_helper
    s_setprio 3
    v_and_b32 v2, 31, v1
    v_lshrrev_b32 v3, 5, v1
    v_lshlrev_b32 v126, 4, v2
    v_mov_b32 v{VCNT}, {CNT}
    v_mov_b32 v{VCNT+1}, 1
    """)
    a(f"""
    s_mul_i32 s30, s3, {QBLK}
    s_add_u32 s30, s30, {WS_Q}
    s_lshl_b32 s12, s66, 10
    s_add_u32 s12, s12, s30                 ; Q1 fragment of head w
    s_lshr_b32 s13, s66, 1
    s_and_b32 s13, s13, 1
    s_lshl_b32 s13, s13, 10
    s_lshl_b32 s14, s7, 9
    s_add_u32 s13, s13, s14
    s_and_b32 s14, s66, 1
    s_lshl_b32 s14, s14, 3
    s_add_u32 s13, s13, s14
    s_add_u32 s13, s13, s30
    s_add_u32 s13, s13, 8192                ; Q2 piece of head w
    v_add_u32 v{G_KA}, {R_KA}, v127
    v_lshlrev_b32 v{G_KB}, 3, v2
    v_add_u32 v{G_KB}, {R_KB}, v{G_KB}
    v_lshrrev_b32 v{G_V}, 2, v2
    v_or_b32 v{G_V}, 0x0c0c0c00, v{G_V}
    v_mov_b32 v16, {lo:#x}
    v_mov_b32 v17, {hi:#x}
    v_perm_b32 v{G_V}, v17, v16, v{G_V}
    v_and_b32 v16, 3, v1
    v_mul_u32_u24 v17, 21, v3
    v_add3_u32 v{G_V}, v{G_V}, v16, v17
    v_lshlrev_b32 v{G_V}, 4, v{G_V}
    v_add_u32 v{A_V}, {REC - LOFF}, v{G_V}
    v_add_u32 v{A_KA}, {REC - LOFF}, v{G_KA}
    v_add_u32 v{A_KB}, {REC - LOFF}, v{G_KB}
    v_lshlrev_b32 v16, 3, v2
    """)
    m = 0
    for i in (18, 19, 22, 23, 25, 26, 27, 29, 30, 31): m |= 1 << i
    a(f"""
    s_mov_b32 exec_lo, {m:#x}
    s_mov_b32 exec_hi, {m:#x}
    v_mov_b32 v{A_V}, 0x40000
    s_mov_b32 exec_lo, 0
    s_mov_b32 exec_hi, -1
    v_mov_b32 v{A_KB}, 0x40000
    s_mov_b64 exec, -1
    """)
    for i in range(16): a(f"v_mov_b32 v{O+i}, 0")
    for i in range(4):
        a(f"v_mov_b32 v{P+4+i}, 0")
        a(f"v_mov_b32 v{GB[0]['vb']+i}, 0")
    a("s_cmp_lg_u32 s66, 4\ns_cbranch_scc1 L_a_qw")
    ev_addr(a, EV_CLR, 30)
    a(f"""
    s_and_b32 s31, s3, 3
    s_lshl_b32 s31, s31, 7
    s_add_u32 s30, s30, s31
    s_add_u32 s30, s30, 128
    v_mov_b32 v123, s30
    """)
    ev_poll(a, None, None, "L_a_qf", 122, sleep=1)
    cnt_add(a, C_QOK)
    lds_poll(a, VCNT, 124, C_QOK, 1, "L_a_qw", sleep=1)
    st(a, 94)
    a(f"""
    buffer_load_dwordx4 {vr(Q1,4)}, v127, s[8:11], s12 offen sc1
    buffer_load_dwordx2 {vr(Q2,2)}, v126, s[8:11], s13 offen sc1
    """)
    lds_poll(a, VCNT, 124, C_KVA, 4, "L_a_kva", sleep=1)
    a(f"""
    ds_read_b32 v18, v{VCNT} offset:{C_KMAX}
    ds_read_b128 {vr(K0A,4)}, v127
    ds_read_b64 {vr(K0B,2)}, v16 offset:{R_KB - LOFF}
    ds_read_b128 {vr(GB[0]['ka'],4)}, v{A_KA}
    ds_read_b64 {vr(GB[0]['kb'],2)}, v{A_KB}
    ds_read_b128 {vr(GB[0]['va'],4)}, v{A_V} offset:{R_VA}
    s_waitcnt vmcnt(0)
    """)
    st(a, 96)
    cnt_add(a, C_QL2)
    a("s_cmp_eq_u32 s67, 0")
    a("s_cbranch_scc1 L_a_now")
    for u in range(5):
        if u == 3:
            a("s_cmp_eq_u32 s69, 13")
            a("s_cbranch_scc1 L_a_now")
        a(f"buffer_store_dwordx4 {vr(HS+8*u,4)}, v127, s[8:11], s65 offen sc1")
        a(f"buffer_store_dwordx4 {vr(HS+8*u+4,4)}, v127, s[8:11], s65 offen offset:1024 sc1")
        a("s_add_u32 s65, s65, 2048")
    a.label("L_a_now")
    a(f"""
    s_mov_b32 exec_lo, 0
    v_mov_b32 v{Q2}, 0
    v_mov_b32 v{Q2+1}, 0
    s_mov_b64 exec, -1
    v_mov_b32 v2, 0
    v_dot2c_f32_bf16 v2, v{Q1}, v{Q1}
    v_dot2c_f32_bf16 v2, v{Q1+1}, v{Q1+1}
    v_dot2c_f32_bf16 v2, v{Q1+2}, v{Q1+2}
    v_dot2c_f32_bf16 v2, v{Q1+3}, v{Q1+3}
    v_dot2c_f32_bf16 v2, v{Q2}, v{Q2}
    v_dot2c_f32_bf16 v2, v{Q2+1}, v{Q2+1}
    s_nop 2
    v_mov_b32 v3, v2
    s_nop 1
    v_permlane32_swap_b32 v3, v2
    s_waitcnt lgkmcnt(0)
    s_nop 0
    v_add_f32 v2, v2, v3
    v_mul_f32 v2, v18, v2
    v_sqrt_f32 v2, v2
    s_nop 0
    v_sub_f32 v{CM}, 0, v2
    """)
    for i in range(1, 16):
        a(f"v_mov_b32 v{CM+i}, v{CM}")
    if prof: a("s_memtime s[80:81]")
    a(f"""
    s_nop 1
    v_mfma_f32_32x32x16_bf16 {vr(SB[0],16)}, {vr(K0A,4)}, {vr(Q1,4)}, {vr(CM,16)}
    v_mfma_f32_32x32x8_bf16 {vr(SB[0],16)}, {vr(K0B,2)}, {vr(Q2,2)}, {vr(SB[0],16)}
    s_mov_b32 s24, 0
    s_setprio 2
    s_nop 9
    """)
    a.lines.append(".p2align 6")
    a.label("L_a_loop")
    for u in range(U):
        tile_body(a, u & 1, (u + 1) * REC)
    a(f"""
    v_add_u32 v{A_V}, {U*REC}, v{A_V}
    v_add_u32 v{A_KA}, {U*REC}, v{A_KA}
    v_add_u32 v{A_KB}, {U*REC}, v{A_KB}
    s_add_u32 s24, s24, 1
    s_cmp_eq_u32 s24, 1
    s_cbranch_scc1 L_a_e1
    s_cmp_eq_u32 s24, 2
    s_cbranch_scc1 L_a_loop
    s_cmp_eq_u32 s24, 3
    s_cbranch_scc1 L_a_e3
    s_cmp_eq_u32 s24, 4
    s_cbranch_scc1 L_a_e4
    s_cmp_eq_u32 s24, 5
    s_cbranch_scc1 L_a_e5
    s_cmp_eq_u32 s24, 6
    s_cbranch_scc1 L_a_e6
    s_setprio 0
    """)
    for t in range(56, 64):
        tile_body(a, t & 1, (t - 56 + 1) * REC, t)
    a(f"""
    s_nop 1
    v_mfma_f32_32x32x16_bf16 {vr(O,16)}, {vr(GD[64]['vb'],4)}, {vr(P+4,4)}, {vr(O,16)}
    s_mov_b32 s26, 0x12800000               ; 2^-90
    s_lshr_b32 s12, s3, 2
    s_mul_i32 s12, s12, {NKS}
    s_and_b32 s13, s3, 3
    s_lshl_b32 s13, s13, 3
    s_add_u32 s13, s13, s66                 ; head
    s_add_u32 s14, s12, s13
    s_lshl_b32 s14, s14, 10
    s_add_u32 s14, s14, {WS_AH}
    s_lshr_b32 s15, s13, 2
    s_add_u32 s15, s15, s12
    s_lshl_b32 s15, s15, 10
    s_and_b32 s13, s13, 3
    s_lshl_b32 s13, s13, 2
    s_add_u32 s15, s15, s13
    s_add_u32 s15, s15, {WS_AH + 32*1024}
    v_cmp_ne_u32 s[32:33], s64, v162
    v_cmp_ne_u32 s[34:35], s54, v163
    v_mov_b32 v164, s64
    s_lshr_b32 s29, s3, 2
    s_mul_i32 s29, s29, {MBS}
    s_and_b32 s31, s3, 3
    s_lshl_b32 s31, s31, 7
    s_add_u32 s29, s29, s31
    s_lshl_b32 s31, s66, 2
    s_add_u32 s29, s29, s31
    s_add_u32 s29, s29, {WS_MB + L_CLR*MBS + 640}
    s_or_b32 s55, s32, s34
    v_cmp_nle_f32 vcc, s26, v{O+SUMREG}
    s_cbranch_vccnz L_a_fallback
    """)
    a.label("L_a_fin")
    st(a, 98)
    a(f"v_rcp_f32 v2, v{O+SUMREG}")
    a("s_nop 0")
    for i in range(10): a(f"v_mul_f32 v{O+i}, v{O+i}, v2")
    for i in range(5): a(f"v_cvt_pk_bf16_f32 v{P+i}, v{O+2*i}, v{O+2*i+1}")
    two_way(a, "L_a_os", [f"buffer_store_dwordx4 {vr(P,4)}, v127, s[8:11], s14 offen",
                          f"buffer_store_dword v{P+4}, v127, s[8:11], s15 offen"])
    a("s_mov_b64 exec, 1")
    two_way(a, "L_a_oh2", ["buffer_store_dword v164, off, s[8:11], s29"])
    a("s_mov_b64 exec, -1")
    if prof:
        pf.n = 6
        pf.dump(wave="s66", vtmp=88)
        a("""
        s_mov_b32 s74, s90
        s_mov_b32 s76, s92
        s_mov_b32 s78, s94
        s_mov_b32 s80, s96
        s_mov_b32 s100, s98
        """)
        pf.slot = 2
        pf.dump(wave="s66", vtmp=88, last="s100")
        pf.slot = 0
    a.label("L_end")
    a("s_endpgm")
    a.label("L_a_e1")
    lds_poll(a, VCNT, 124, C_KVB, 4, "L_a_kvb", sleep=1)
    a(f"""
    s_cmp_eq_u32 s67, 0
    s_cbranch_scc1 L_a_loop
    s_waitcnt vmcnt(0)
    s_mov_b64 exec, 1
    ds_add_rtn_u32 v124, v{VCNT}, v{VCNT+1} offset:{C_PUB}
    s_waitcnt lgkmcnt(0)
    v_readfirstlane_b32 s27, v124
    s_mov_b64 exec, -1
    s_cmp_lg_u32 s27, 3
    s_cbranch_scc1 L_a_loop
    s_and_b32 s30, s2, 6
    s_lshl_b32 s30, s30, 1
    s_bfe_u32 s32, s2, 0x20003
    s_add_u32 s30, s30, s32                 ; mt
    s_mul_i32 s30, s30, {MBS}
    s_lshl_b32 s31, s69, 2
    s_add_u32 s30, s30, s31
    s_add_u32 s30, s30, {WS_MB + L_H*MBS - 16}
    """)
    publish(a, "s30", 1, 122)
    a("s_branch L_a_loop")
    a.label("L_a_e3")
    lds_poll(a, VCNT, 124, C_KVC, 4, "L_a_kvc", sleep=1)
    a("s_branch L_a_loop")
    a.label("L_a_e4")
    cnt_add(a, C_P32)
    a("s_branch L_a_loop")
    a.label("L_a_e5")
    a(f"""
    s_setprio 1
    s_mov_b32 s20, {WS_KV + 62*REC}
    s_mov_b32 s21, {WS_KV + 63*REC}
    s_mov_b32 s22, {WS_KV + 64*REC}
    s_mov_b32 s23, {WS_KV + 65*REC}
    buffer_load_dwordx4 {vr(GD[61]['ka'],4)}, v{G_KA}, s[8:11], s20 offen sc1
    buffer_load_dwordx2 {vr(GD[61]['kb'],2)}, v{G_KB}, s[8:11], s20 offen sc1
    buffer_load_dwordx4 {vr(GD[62]['vb'],4)}, v{G_V}, s[8:11], s21 offen sc1
    buffer_load_dwordx4 {vr(GD[62]['va'],4)}, v{G_V}, s[8:11], s21 offen offset:{R_VA} sc1
    buffer_load_dwordx4 {vr(GD[62]['ka'],4)}, v{G_KA}, s[8:11], s21 offen sc1
    buffer_load_dwordx2 {vr(GD[62]['kb'],2)}, v{G_KB}, s[8:11], s21 offen sc1
    buffer_load_dwordx4 {vr(GD[63]['vb'],4)}, v{G_V}, s[8:11], s22 offen sc1
    buffer_load_dwordx4 {vr(GD[63]['va'],4)}, v{G_V}, s[8:11], s22 offen offset:{R_VA} sc1
    buffer_load_dwordx4 {vr(GD[64]['vb'],4)}, v{G_V}, s[8:11], s23 offen sc1
    v_and_b32 v164, 3, v1
    v_lshlrev_b32 v164, 3, v164
    """)
    ev_addr(a, EV_CLR, 30)
    a("""
    buffer_load_dwordx2 v[162:163], v164, s[8:11], s30 offen offset:64 sc1
    s_branch L_a_loop
    """)
    a.label("L_a_e6")
    cnt_add(a, C_P48)
    lds_poll(a, VCNT, 124, C_CLRO, 4, "L_a_clro", sleep=1)
    a("s_branch L_a_loop")
    gen_a_helper(a, pf)
    gen_fallback(a)

def gen_a_helper(a, pf):
    prof = pf.on
    a.label("L_a_helper")
    a(f"""
    v_mov_b32 v2, v127
    v_mov_b32 v4, 0
    v_mov_b32 v10, v1
    s_setprio 2
    """)
    get_tag(a, "L_a_tag", 4, 8)
    a(f"v_mov_b32 v0, {CNT}\nv_mov_b32 v5, 1")
    a("s_cmp_lg_u32 s6, 0\ns_cbranch_scc1 L_a_kvf")
    ev_poll(a, EV_KV, 32, "L_a_kvp", 8, sleep=3)
    cnt_add(a, C_KVF, 0, 5)
    lds_poll(a, 0, 3, C_KVF, 1, "L_a_kvf", sleep=1)
    a(f"""
    s_lshl_b32 s22, s6, 10
    s_add_u32 s23, s22, {WS_KV + LOFF}
    """)
    kv_first(a)
    a("s_cmp_ge_u32 s2, 64\ns_cbranch_scc1 L_a_qst_ok")
    lds_poll(a, 0, 3, C_QLD, 4, "L_a_qst", sleep=2)
    for i in range(10, 18): kv_round(a)
    st(a, 94)
    for i in range(4): a(f"v_mov_b32 v{40+i}, -1")
    a(f"""
    s_lshr_b32 s20, s3, 2                   ; tt
    s_and_b32 s21, s3, 3                    ; cg
    v_and_b32 v6, 31, v1
    v_mul_u32_u24 v6, 1280, v6
    v_lshrrev_b32 v7, 5, v1
    v_mul_u32_u24 v7, 160, v7
    v_add_u32 v1, v6, v7
    s_mul_i32 s38, s20, {32*1280}
    s_mul_i32 s27, s21, 320
    s_add_u32 s38, s38, s27
    s_mul_i32 s27, s6, 40
    s_add_u32 s38, s38, s27
    """)
    cm = [5 * (4 * (g & 1) + (g >> 1)) for g in range(8)]
    lo, hi = pack_bytes(cm)
    a(f"""
    s_lshr_b32 s36, s2, 2
    s_mul_i32 s36, s36, 3
    s_add_u32 s36, s36, s6
    s_sub_u32 s36, s36, 1
    s_cmp_eq_u32 s6, 0
    s_cselect_b32 s36, 999, s36
    s_and_b32 s37, s2, 3
    s_mul_i32 s29, s6, 5120
    s_add_u32 s29, s29, {RL_LDS - 5120}
    v_bfe_u32 v33, v10, 4, 1
    v_and_b32 v34, 3, v10
    v_lshl_add_u32 v33, v33, 2, v34
    v_or_b32 v33, 0x0c0c0c00, v33
    v_mov_b32 v34, {lo:#x}
    v_mov_b32 v35, {hi:#x}
    v_perm_b32 v34, v35, v34, v33
    v_lshrrev_b32 v35, 5, v10
    v_bfe_u32 v32, v10, 2, 2
    v_lshl_add_u32 v32, v35, 3, v32
    v_mul_u32_u24 v32, 320, v32
    v_lshl_add_u32 v13, v34, 3, v32
    v_add_u32 v13, s29, v13
    v_mul_u32_u24 v14, {MBS}, v10
    v_mov_b32 v15, s64
    """)
    lds_poll(a, 0, 3, C_RING, "s39", "L_a_ring", sleep=2)
    for ct in range(5):
        a(f"ds_read_b64_tr_b16 {vr(48+4*ct,2)}, v13 offset:{ct*8}")
        a(f"ds_read_b64_tr_b16 {vr(50+4*ct,2)}, v13 offset:{ct*8 + 4*320}")
    a("s_waitcnt lgkmcnt(0)")
    cnt_add(a, C_RING, 0, 5)
    a("s_add_u32 s39, s39, 4")
    for i in range(18, 40):
        if i == 36: lds_poll(a, 0, 3, C_RING, "s39", "L_a_ring2", sleep=2)
        if i == 39:
            a("s_cmp_eq_u32 s6, 3")
            a("s_cselect_b32 exec_hi, 3, -1")
        kv_round(a)
        if i == 22:
            a("s_waitcnt vmcnt(6)")
            cnt_add(a, C_KVB, 0, 5)
    a("s_mov_b64 exec, -1")
    a("s_waitcnt vmcnt(0)")
    cnt_add(a, C_KVC, 0, 5)
    st(a, 96)
    a("s_setprio 3")
    lds_poll(a, 0, 3, C_QL2, 8, "L_a_ql2", sleep=4)
    a(f"""
    s_cmp_ge_u32 s36, {NKS}
    s_cbranch_scc1 L_a_norl
    s_mul_i32 s30, s37, {NKS}
    s_add_u32 s30, s30, s36
    s_mul_i32 s30, s30, 5120
    s_add_u32 s30, s30, {WS_W}
    s_add_u32 s31, s30, 4096
    """)
    for ct in range(5):
        if ct < 4: a(f"buffer_store_dwordx4 {vr(48+4*ct,4)}, v{L16}, s[8:11], s30 offen offset:{ct*1024} sc1")
        else: a(f"buffer_store_dwordx4 {vr(48+4*ct,4)}, v{L16}, s[8:11], s31 offen sc1")
    a.label("L_a_norl")
    clear_o(a)
    st(a, 98)
    a(f"""
    s_waitcnt vmcnt(0)
    s_mov_b64 exec, 1
    ds_add_rtn_u32 v3, v0, v5 offset:{C_CLRO}
    s_waitcnt lgkmcnt(0)
    v_readfirstlane_b32 s27, v3
    s_mov_b64 exec, -1
    s_cmp_lg_u32 s27, 3
    s_cbranch_scc1 L_a_noclr
    """)
    publish_clr_o(a, "v10")
    a(f"""
    s_cmp_ge_u32 s2, {4*46}
    s_cbranch_scc1 L_a_noclr
    s_mul_i32 s30, s37, {8*MBS}
    s_and_b32 s31, s2, 0xfc
    s_add_u32 s30, s30, s31
    s_add_u32 s30, s30, {WS_MB + L_W*MBS}
    s_mov_b64 exec, 0xff
    buffer_store_dword v15, v14, s[8:11], s30 offen sc1
    s_mov_b64 exec, -1
    """)
    a.label("L_a_noclr")
    a("s_cmp_lg_u32 s6, 0\ns_cbranch_scc1 L_a_ff")
    ev_poll(a, EV_H, 10, "L_a_hp", 8, sleep=8, vlane="v10")
    ev_poll(a, EV_W, 46, "L_a_wp", 8, sleep=12, vlane="v10")
    cnt_add(a, C_FF, 0, 5)
    lds_poll(a, 0, 3, C_FF, 1, "L_a_ff", sleep=4)
    if prof: a("s_memtime s[74:75]")
    a(f"""
    s_setprio 0
    s_mul_i32 s22, s6, 24
    s_add_u32 s22, s22, 40
    s_mul_i32 s33, s20, {NKS}
    s_add_u32 s23, s33, s22
    s_lshl_b32 s23, s23, 10
    s_add_u32 s23, s23, {WS_AH}             ; H' offset
    s_mul_i32 s34, s21, {NKS}
    s_add_u32 s24, s34, s22
    s_mul_i32 s24, s24, 5120
    s_add_u32 s24, s24, {WS_W}              ; W' offset
    """)
    def gload(i):
        b = GFB + 24 * (i % GDEPTH)
        a(f"buffer_load_dwordx4 {vr(b,4)}, v2, s[8:11], s23 offen sc1")
        for ct in range(4):
            a(f"buffer_load_dwordx4 {vr(b+4+4*ct,4)}, v2, s[8:11], s24 offen offset:{ct*1024} sc1")
        a("s_add_u32 s25, s24, 4096")
        a(f"buffer_load_dwordx4 {vr(b+20,4)}, v2, s[8:11], s25 offen sc1")
        a("s_add_u32 s23, s23, 1024")
        a("s_add_u32 s24, s24, 5120")
    def gmfma(i, first=False):
        b = GFB + 24 * (i % GDEPTH)
        for ct in range(5):
            a(f"v_mfma_f32_32x32x16_bf16 {vr(GACC+16*ct,16)}, {vr(b+4+4*ct,4)}, {vr(b,4)}, {'0' if first else vr(GACC+16*ct,16)}")
    for i in range(GDEPTH): gload(i)
    a(f"s_mov_b32 s26, {24 // GDEPTH - 1}")
    a(f"s_waitcnt vmcnt({6*(GDEPTH-1)})")
    gmfma(0, True)
    a("s_branch L_a_gin")
    a.label("L_a_gloop")
    for i in range(GDEPTH):
        a(f"s_waitcnt vmcnt({6*(GDEPTH-1)})")
        gmfma(i)
        if i == 0: a.label("L_a_gin")
        gload(i)
    a("""
    s_sub_u32 s26, s26, 1
    s_cmp_lg_u32 s26, 0
    s_cbranch_scc1 L_a_gloop
    """)
    for i in range(GDEPTH):
        a(f"s_waitcnt vmcnt({6*(GDEPTH-1-i)})")
        gmfma(i)
    if prof: a("s_memtime s[76:77]")
    a("s_setprio 3")
    WA_, WB_, WX = GFB, GFB + 20, GFB + 40
    OF = [GFB + 44 + 4 * i for i in range(7)] + [4, 8, 12]
    a(f"""
    s_lshl_b32 s22, s6, 1
    s_add_u32 s22, s22, 32
    s_add_u32 s24, s34, s22
    s_mul_i32 s24, s24, 5120
    s_add_u32 s24, s24, {WS_W}              ; leftover steps
    s_lshl_b32 s35, s6, 3
    s_add_u32 s36, s34, s35
    s_mul_i32 s36, s36, 5120
    s_add_u32 s36, s36, {WS_W}              ; head steps
    """)
    for f in range(10):
        if f % 4 == 0 and f: a("s_add_u32 s24, s24, 4096")
        a(f"buffer_load_dwordx4 {vr(WA_+4*f,4)}, v2, s[8:11], s24 offen offset:{(f%4)*1024} sc1")
    a(f"buffer_load_dwordx4 {vr(WX,4)}, v2, s[8:11], s36 offen sc1")
    a(f"""
    s_add_u32 s36, s36, 1024
    s_lshl_b32 s37, s6, 10
    """)
    def wdma(n):
        for _ in range(n):
            a("s_mov_b32 m0, s37")
            a("s_add_u32 s37, s37, 4096")
            a("buffer_load_dwordx4 v2, s[8:11], s36 offen sc1 lds")
            a("s_add_u32 s36, s36, 1024")
    ev_poll(a, EV_CLR, 4, "L_a_cp", 8, sleep=8, vlane="v10")
    lds_poll(a, 0, 3, C_P32, 8, "L_a_w0"); wdma(20)
    lds_poll(a, 0, 3, C_P48, 8, "L_a_w1"); wdma(10)
    lds_poll(a, 0, 3, C_REL, 8, "L_a_w2"); wdma(9)
    st(a, 90)
    a(f"""
    s_setprio 3
    s_add_u32 s23, s33, s22
    s_lshl_b32 s23, s23, 10
    s_add_u32 s23, s23, {WS_AH}             ; O' leftover steps
    s_add_u32 s25, s33, s35
    s_lshl_b32 s25, s25, 10
    s_add_u32 s25, s25, {WS_AH}             ; O' head steps
    s_add_u32 s26, s25, 4096
    """)
    ev_addr(a, EV_CLR, 30)
    a("""
    s_lshl_b32 s31, s6, 7
    s_add_u32 s30, s30, s31
    s_add_u32 s30, s30, 640
    v_and_b32 v9, 7, v10
    v_lshl_add_u32 v9, v9, 2, s30
    """)
    ev_poll(a, None, None, "L_a_oh", 8, sleep=0)
    st(a, 92)
    a("s_mov_b32 s28, 0")
    def oload(j):
        if j < 2: a(f"buffer_load_dwordx4 {vr(OF[j],4)}, v2, s[8:11], s23 offen offset:{j*1024} sc1")
        else: a(f"buffer_load_dwordx4 {vr(OF[j],4)}, v2, s[8:11], {'s25' if j < 6 else 's26'} offen offset:{((j-2)%4)*1024} sc1")
    a.label("L_a_opoll")
    for j in range(10): oload(j)
    a("s_waitcnt vmcnt(0)")
    a(f"v_max3_u32 v3, v{OF[0]}, v{OF[0]+1}, v{OF[0]+2}")
    regs = [OF[0] + 3] + [OF[j] + k for j in range(1, 10) for k in range(4)]
    for i in range(0, len(regs) - 1, 2): a(f"v_max3_u32 v3, v3, v{regs[i]}, v{regs[i+1]}")
    a(f"v_max_u32 v3, v3, v{regs[-1]}")
    a(f"""
    v_cmp_eq_u32 vcc, -1, v3
    s_cbranch_vccz L_a_ook
    s_add_u32 s28, s28, 1
    s_cmp_lt_u32 s28, {SPIN}
    s_cbranch_scc1 L_a_opoll
    """)
    a.label("L_a_ook")
    if prof: a("s_memtime s[80:81]\ns_waitcnt lgkmcnt(0)")
    a(f"""
    s_lshl_b32 s27, s6, 10
    v_add_u32 v0, s27, v2
    v_add_u32 v3, 0x10000, v0
    """)
    def wreg(j, ct):
        if j == 2 and ct == 0: return WX
        return (WA_ if j % 2 == 0 else WB_) + 4 * ct
    outstanding = []
    hi_set = False
    XR = OF[0]
    srd(a, 12, 44, S * D * 2)
    for j in range(10):
        if j == 3:
            a(f"buffer_load_dwordx4 {vr(XR,4)}, v1, s[12:15], s38 offen")
            a(f"buffer_load_dwordx4 {vr(XR+4,4)}, v1, s[12:15], s38 offen offset:16")
            a(f"buffer_load_dwordx2 {vr(XR+8,2)}, v1, s[12:15], s38 offen offset:32")
        for ct in range(5):
            if (j, ct) in outstanding:
                k = outstanding.index((j, ct))
                a(f"s_waitcnt lgkmcnt({len(outstanding)-k-1})")
                outstanding = outstanding[k+1:]
            a(f"v_mfma_f32_32x32x16_bf16 {vr(GACC+16*ct,16)}, {vr(wreg(j,ct),4)}, {vr(OF[j],4)}, {vr(GACC+16*ct,16)}")
            jn = j + 2
            if jn < 10 and not (jn == 2 and ct == 0):
                f = (jn - 2) * 5 + ct - 1
                off = f * 4096
                if off >= 0x20000 and not hi_set:
                    a("v_add_u32 v0, 0x20000, v0"); hi_set = True
                base = "v0" if (off < 0x10000 or off >= 0x20000) else "v3"
                a(f"ds_read_b128 {vr(wreg(jn,ct),4)}, {base} offset:{off & 0xffff}")
                outstanding.append((jn, ct))
    st(a, 94)
    srd(a, 28, 60, S * D * 2)
    a(f"""
    s_mul_i32 s27, s6, 5120
    v_add_u32 v6, s27, v2
    s_mul_i32 s27, s6, 20480
    v_add_u32 v7, s27, v2
    v_add_u32 v5, 40960, v6
    s_barrier
    """)
    for rg in range(4):
        for ct in range(5):
            a(f"ds_write_b128 v{6 if rg < 2 else 5}, {vr(GACC+16*ct+4*rg,4)} offset:{(rg&1)*20480 + ct*1024}")
    st(a, 96)
    a("s_waitcnt vmcnt(0)")
    for i in range(10):
        a(f"v_lshlrev_b32 v{GFB+12+2*i}, 16, v{XR+i}")
        a(f"v_and_b32 v{GFB+13+2*i}, 0xffff0000, v{XR+i}")
    a("s_waitcnt lgkmcnt(0)")
    a("s_barrier")
    for g in range(4):
        for ct in range(5):
            a(f"ds_read_b128 {vr(GACC+20*g+4*ct,4)}, v7 offset:{g*5120 + ct*1024}")
        if g == 2: a("s_waitcnt lgkmcnt(5)")
    for i in range(10):
        a(f"v_pk_add_f32 {vr(GACC+2*i,2)}, {vr(GACC+2*i,2)}, {vr(GACC+20+2*i,2)}")
    for i in range(10):
        a(f"v_pk_add_f32 {vr(GACC+2*i,2)}, {vr(GACC+2*i,2)}, {vr(GFB+12+2*i,2)}")
    a("s_waitcnt lgkmcnt(0)")
    for i in range(10):
        a(f"v_pk_add_f32 {vr(GACC+40+2*i,2)}, {vr(GACC+40+2*i,2)}, {vr(GACC+60+2*i,2)}")
    for i in range(10):
        a(f"v_pk_add_f32 {vr(GACC+2*i,2)}, {vr(GACC+2*i,2)}, {vr(GACC+40+2*i,2)}")
    for i in range(10):
        a(f"v_cvt_pk_bf16_f32 v{GFB+i}, v{GACC+2*i}, v{GACC+2*i+1}")
    a(f"""
    buffer_store_dwordx4 {vr(GFB,4)}, v1, s[28:31], s38 offen
    buffer_store_dwordx4 {vr(GFB+4,4)}, v1, s[28:31], s38 offen offset:16
    buffer_store_dwordx2 {vr(GFB+8,2)}, v1, s[28:31], s38 offen offset:32
    """)
    if prof:
        st(a, 98)
        a("s_waitcnt vmcnt(0)")
        pf.n = 6
        pf.dump(wave="s66", vtmp=120)
        a("""
        s_mov_b32 s74, s90
        s_mov_b32 s76, s92
        s_mov_b32 s78, s94
        s_mov_b32 s80, s96
        s_mov_b32 s100, s98
        s_add_u32 s66, s66, 4
        """)
        pf.dump(wave="s66", vtmp=120, last="s100")
    a("s_endpgm")

def gen_fallback(a):
    a.label("L_a_fallback")
    a(f"""
    s_mov_b32 s20, {WS_KV}
    s_mov_b32 s24, 0
    v_mov_b32 v2, 0xff800000
    """)
    a.label("L_a_fb1")
    a(f"""
    buffer_load_dwordx4 {vr(K0A,4)}, v{G_KA}, s[8:11], s20 offen sc1
    buffer_load_dwordx2 {vr(K0B,2)}, v{G_KB}, s[8:11], s20 offen sc1
    s_waitcnt vmcnt(0)
    v_mfma_f32_32x32x16_bf16 {vr(SB[0],16)}, {vr(K0A,4)}, {vr(Q1,4)}, 0
    v_mfma_f32_32x32x8_bf16 {vr(SB[0],16)}, {vr(K0B,2)}, {vr(Q2,2)}, {vr(SB[0],16)}
    s_nop 15
    """)
    for i in range(0, 16, 2):
        a(f"v_max3_f32 v2, v{SB[0]+i}, v{SB[0]+i+1}, v2")
    a(f"""
    s_add_u32 s20, s20, {REC}
    s_add_u32 s24, s24, 1
    s_cmp_lt_u32 s24, 64
    s_cbranch_scc1 L_a_fb1
    v_mov_b32 v3, v2
    s_nop 1
    v_permlane32_swap_b32 v3, v2
    s_nop 1
    v_max_f32 v2, v2, v3
    v_sub_f32 v{CM}, 0, v2
    """)
    for i in range(1, 16): a(f"v_mov_b32 v{CM+i}, v{CM}")
    for i in range(16): a(f"v_mov_b32 v{O+i}, 0")
    g = GB[0]; s = SB[0]
    a(f"""
    s_mov_b32 s20, {WS_KV}
    s_mov_b32 s24, 0
    """)
    a.label("L_a_fb2")
    a(f"""
    s_add_u32 s21, s20, {REC}
    s_add_u32 s22, s20, {2*REC}
    buffer_load_dwordx4 {vr(K0A,4)}, v{G_KA}, s[8:11], s20 offen sc1
    buffer_load_dwordx2 {vr(K0B,2)}, v{G_KB}, s[8:11], s20 offen sc1
    buffer_load_dwordx4 {vr(g['va'],4)}, v{G_V}, s[8:11], s21 offen offset:{R_VA} sc1
    buffer_load_dwordx4 {vr(g['vb'],4)}, v{G_V}, s[8:11], s22 offen sc1
    s_waitcnt vmcnt(0)
    v_mfma_f32_32x32x16_bf16 {vr(s,16)}, {vr(K0A,4)}, {vr(Q1,4)}, {vr(CM,16)}
    v_mfma_f32_32x32x8_bf16 {vr(s,16)}, {vr(K0B,2)}, {vr(Q2,2)}, {vr(s,16)}
    s_nop 15
    """)
    for i in range(16): a(f"v_exp_f32 v{s+i}, v{s+i}")
    a("s_nop 0")
    for i in range(8): a(f"v_cvt_pk_bf16_f32 v{P+i}, v{s+2*i}, v{s+2*i+1}")
    a(f"""
    s_nop 1
    v_mfma_f32_32x32x16_bf16 {vr(O,16)}, {vr(g['va'],4)}, {vr(P,4)}, {vr(O,16)}
    v_mfma_f32_32x32x16_bf16 {vr(O,16)}, {vr(g['vb'],4)}, {vr(P+4,4)}, {vr(O,16)}
    s_add_u32 s20, s20, {REC}
    s_add_u32 s24, s24, 1
    s_cmp_lt_u32 s24, 64
    s_nop 15
    s_cbranch_scc1 L_a_fb2
    s_branch L_a_fin
    """)

def gen_mega(a, name, prof=False):
    kernel_head(a, name)
    a.label("L_code_begin")
    PROFON[0] = prof
    pf = Prof(a, prof, 70, 0, 12)
    pf.start()
    if prof: a("s_mov_b32 s74, 1\ns_mov_b32 s76, 1")
    a(f"""
    s_cmp_ge_u32 s2, 256
    s_cbranch_scc1 L_end
    s_load_dwordx8 s[44:51], s[0:1], 0
    s_load_dwordx2 s[52:53], s[0:1], {KA_WO}
    s_load_dwordx8 s[56:63], s[0:1], {KA_W1}     ; w1, w2, out, debug
    s_load_dwordx2 s[4:5], s[0:1], {KA_WS}
    v_and_b32 v1, 63, v0                    ; lane
    v_lshrrev_b32 v2, 6, v0
    v_lshlrev_b32 v{L16}, 4, v1
    v_readfirstlane_b32 s66, v2
    s_and_b32 s20, s2, 7
    s_lshr_b32 s21, s2, 3
    s_getreg_b32 s54, hwreg(HW_REG_XCC_ID, 0, 4)
    s_and_b32 s6, s66, 3
    s_lshr_b32 s7, s66, 2
    s_lshl_b32 s3, s20, 5
    s_add_u32 s3, s3, s21
    s_cmp_ge_u32 s21, 28
    s_cbranch_scc1 L_h_start
    """)
    gen_phase_p(a, pf)
    gen_phase_a(a, pf)
    gen_helper_p(a, pf)
    a.label("L_code_end")
    a("s_endpgm")
    return kernel_desc(name, NV)
```

```python
import sys
from asmlib import *
from layout import *
from mega import gen_mega
NAME = "parallel_sum__grouped_kv_mqa__dense_activation_silu__prompt"
def build(path, prof=False, aslist=False):
    a = Asm()
    ref = open(f"cdna_kernels/{NAME}.s.ref").read().split("\n")
    hdr = [l for l in ref if l.startswith(";") and "@launch" not in l and "Override launch" not in l and "grid=ceil" not in l]
    k = NAME + "_kernel"
    hdr.append(f"; @launch {'kernel=' + k + ' ' if aslist else ''}grid=(256,1,1) block=(768,1,1) lds=163840")
    d = gen_mega(a, k, prof=prof)
    txt = "\n".join(hdr) + '\n.amdgcn_target "amdgcn-amd-amdhsa--gfx950"\n' + a.text() + '.section .rodata,"a"\n.p2align 6\n' + d
    open(path, "w").write(txt)
if __name__ == "__main__":
    build(f"cdna_kernels/{NAME}.s")
    build("prof.s", prof=True, aslist=True)
    build("rel.s", prof=False, aslist=True)
```

```python
from asmlib import *
from layout import *
import math, struct, os

def f32bits(x): return struct.unpack("<I", struct.pack("<f", x))[0]
QSCALE = DH ** -0.5 * math.log2(math.e)
NV = 168
SPIN = 0x40000
OUTF = os.environ.get('OUTF', '')
WBL2 = os.environ.get('WBL2') is not None
TLBS = int(os.environ.get('TLBS', '0'))
KVQ = True
WARMQ = False
NTX = os.environ.get('NTX', '')
NTW = os.environ.get('NTW', '')
NTH = os.environ.get('NTH', '')
GSP = os.environ.get('GSP', '')
GPRIO = int(os.environ.get('GPRIO', '0'))
HEARLY = os.environ.get('HEARLY') is not None
LASTP = int(os.environ.get('LASTP', '4'))
TPRIO = int(os.environ.get('TPRIO', '3'))
HMODE = int(os.environ.get('HMODE', '2'))
ROLL = int(os.environ.get('ROLL', '0'))
THR = os.environ.get('THR', '2')
MID = int(os.environ.get('MID', '1'))
NOHINT = int(os.environ.get('NOHINT', '1'))
ROT = os.environ.get('ROT') is not None
PREF = os.environ.get('PREF', '1')

XA = 4
WA = 8
XF = 14
L16 = 30
CSA = 31
STV = 36
CSP = [84, 86, 40, 42, 2]
WF = [44, 64]
ACC = 88
STAGE = 36864
LEAD = int(os.environ.get('LEAD', '2'))
STCH = int(os.environ.get('STCH', '9'))
CNT = 163584
C_P32, C_P48, C_REL, C_KVA, C_KVC, C_PUB, C_KMAX = 0, 4, 8, 12, 16, 20, 24
C_KVB, C_CS, C_CLRO, C_QOK, C_RING, C_QLD, C_FF, C_KVF = 32, 36, 40, 44, 48, 52, 56, 60

def quadmap(kind, u):
    if kind == "H": return [8 * u + g for g in range(8)]
    if u < 4: return [5 * (2 * u + (g >> 2)) + 2 * (g & 1) + ((g >> 1) & 1) for g in range(8)]
    return [5 * (4 * (g & 1) + (g >> 1)) + 4 for g in range(8)]

def bf16_round(a, dst, src):
    a(f"v_cvt_pk_bf16_f32 v{dst}, v{src}, v{src}")
    a(f"v_and_b32 v{dst}, 0xffff0000, v{dst}")

def issue_chunk(a):
    a("""
    s_lshl_b32 s38, s39, 7
    s_add_u32 s38, s38, s42
    s_mul_i32 s37, s39, s31
    """)
    for i in range(4):
        a(f"s_add_u32 m0, s40, {i*1024}" if i else "s_mov_b32 m0, s40")
        a(f"s_add_u32 s43, s38, {i*8*1280}" if i else "s_mov_b32 s43, s38")
        a(f"buffer_load_dwordx4 v{5 if i & 1 else 4}, s[12:15], s43 offen{NTX} lds")
    for j in range(5):
        a(f"s_add_u32 m0, s41, {j*4096}" if j else "s_mov_b32 m0, s41")
        a("s_nop 0")
        a(f"buffer_load_dwordx4 v{6+j}, s[24:27], s37 offen{NTW} lds")
    a(f"""
    s_add_u32 s39, s39, 1
    s_cmp_eq_u32 s39, 10
    s_cselect_b32 s39, 0, s39
    s_add_u32 s40, s40, {STAGE}
    s_add_u32 s41, s41, {STAGE}
    s_cmp_ge_u32 s40, {4*STAGE}
    s_cselect_b32 s43, {4*STAGE}, 0
    s_sub_u32 s40, s40, s43
    s_sub_u32 s41, s41, s43
    """)

def read_list(ks, buf):
    L = [f"ds_read_b128 {vr(XF+4*ks,4)}, v{XA+ks}"]
    for u in range(5):
        for n in range(2):
            L.append(f"ds_read_b64_tr_b16 {vr(WF[buf]+4*u+2*n,2)}, v{WA+u} offset:{(16*ks+4*n)*320}")
    return L

def piece_addr(a, j, nw, rowreg, piecereg):
    a(f"""
    v_add_u32 v32, s30, v1
    v_add_u32 v32, {j*64*nw}, v32
    v_mul_u32_u24 v33, 3277, v32
    v_lshrrev_b32 v{rowreg}, 16, v33
    v_mul_u32_u24 v33, 20, v{rowreg}
    v_sub_u32 v{piecereg}, v32, v33
    """)

C_PUB2 = 28
C_QL2 = 64
C_RED, C_RED2, C_O0, C_O1, C_B = 68, 72, 76, 80, 84

def get_tag(a, lbl, vz, vt):
    a("s_mov_b32 s28, 0")
    a.label(lbl)
    a(f"""
    buffer_load_dword v{vt}, v{vz}, s[16:19], 0 offen sc1
    s_add_u32 s28, s28, 1
    s_waitcnt vmcnt(0)
    v_readfirstlane_b32 s64, v{vt}
    s_cmp_lg_u32 s64, 0
    s_cbranch_scc1 {lbl}_ok
    s_sleep 2
    s_cmp_lt_u32 s28, {SPIN}
    s_cbranch_scc1 {lbl}
    """)
    a.label(lbl + "_ok")

def publish(a, soff, nl, vt, vlane="v1"):
    a(f"""
    v_mul_u32_u24 v{vt}, {MBS}, {vlane}
    v_mov_b32 v{vt+1}, s64
    s_mov_b32 exec_lo, {(1 << nl) - 1 if isinstance(nl, int) else nl}
    s_mov_b32 exec_hi, 0
    buffer_store_dword v{vt+1}, v{vt}, s[8:11], {soff} offen sc1
    s_mov_b64 exec, -1
    """)

def ev_addr(a, ev, sd):
    sh, base = {EV_H: (4, L_H), EV_CLR: (2, L_CLR), EV_KV: (5, L_KV), EV_W: (5, L_W)}[ev]
    a(f"s_lshr_b32 s{sd}, s3, {sh}")
    if ev == EV_W: a(f"s_and_b32 s31, s3, 3\ns_lshl_b32 s31, s31, 3\ns_add_u32 s{sd}, s{sd}, s31")
    a(f"s_mul_i32 s{sd}, s{sd}, {MBS}\ns_add_u32 s{sd}, s{sd}, {WS_MB + base*MBS}")

def ev_lane(a, n, vd, vlane="v1"):
    a(f"v_min_u32 v{vd}, {n-1}, {vlane}")
    a(f"v_lshlrev_b32 v{vd}, 2, v{vd}")

def ev_poll(a, ev, n, lbl, vt, sleep=2, vlane="v1", tw=False):
    if ev is None: a("s_mov_b32 s68, 0")
    else:
        ev_addr(a, ev, 68)
        ev_lane(a, n, vt + 1, vlane)
    a("s_mov_b32 s28, 0")
    a.label(lbl)
    if tw: two_way(a, lbl + "_t", [f"buffer_load_dword v{vt}, v{vt+1}, s[8:11], s68 offen"], " nt")
    else: a(f"buffer_load_dword v{vt}, v{vt+1}, s[8:11], s68 offen sc1")
    a(f"""
    s_add_u32 s28, s28, 1
    s_waitcnt vmcnt(0)
    v_cmp_ne_u32 vcc, s64, v{vt}
    s_cbranch_vccz {lbl}_ok
    s_sleep {sleep}
    s_cmp_lt_u32 s28, {SPIN}
    s_cbranch_scc1 {lbl}
    """)
    a.label(lbl + "_ok")

def publish_clr_o(a, vlane="v1", vt=44):
    a(f"""
    s_lshr_b32 s30, s3, 2
    s_mul_i32 s30, s30, {MBS}
    s_and_b32 s31, s3, 3
    s_lshl_b32 s31, s31, 2
    s_add_u32 s30, s30, s31
    s_add_u32 s30, s30, {WS_MB + L_CLR*MBS}
    """)
    publish(a, "s30", 1, vt, vlane)

def publish_xcc(a):
    ev_addr(a, EV_CLR, 30)
    a(f"""
    s_and_b32 s31, s3, 3
    s_lshl_b32 s31, s31, 3
    s_add_u32 s30, s30, s31
    v_mov_b32 v46, s64
    v_mov_b32 v47, s54
    s_mov_b64 exec, 1
    buffer_store_dwordx2 v[46:47], off, s[8:11], s30 offset:64 sc1
    s_mov_b64 exec, -1
    """)

def two_way(a, lbl, ops, local=""):
    a(f"s_cmp_eq_u32 s55, 0\ns_cbranch_scc1 {lbl}_l")
    for x in ops: a(x + " sc1")
    a(f"s_branch {lbl}_e")
    a.label(lbl + "_l")
    for x in ops: a(x + local)
    a.label(lbl + "_e")

def same_die(a, sblk, vt):
    a(f"""
    s_lshr_b32 s30, {sblk}, 2
    s_mul_i32 s30, s30, {MBS}
    s_and_b32 s31, {sblk}, 3
    s_lshl_b32 s31, s31, 3
    s_add_u32 s30, s30, s31
    s_add_u32 s30, s30, {WS_MB + L_CLR*MBS}
    buffer_load_dwordx2 {vr(vt,2)}, off, s[8:11], s30 offset:64 sc1
    s_waitcnt vmcnt(0)
    v_readfirstlane_b32 s30, v{vt}
    v_readfirstlane_b32 s31, v{vt+1}
    s_nop 1
    s_xor_b32 s30, s30, s64
    s_xor_b32 s31, s31, s54
    s_or_b32 s55, s30, s31
    """)

def warm_q(a):
    if not WARMQ: return
    a(f"""
    s_mul_i32 s30, s3, {QBLK}
    s_add_u32 s30, s30, {WS_Q}
    s_add_u32 s31, s30, 2048
    v_lshlrev_b32 v47, 7, v1
    buffer_load_dword v166, v47, s[8:11], s30 offen nt
    buffer_load_dword v167, v47, s[8:11], s31 offen nt
    """)

def clear_o(a):
    a(f"""
    s_lshr_b32 s30, s3, 2
    s_mul_i32 s30, s30, {NKS}
    s_and_b32 s31, s3, 3
    s_lshl_b32 s32, s31, 3
    s_add_u32 s32, s32, s30
    s_lshl_b32 s33, s6, 1
    s_add_u32 s32, s32, s33
    s_lshl_b32 s32, s32, 10
    s_add_u32 s32, s32, {WS_AH}
    buffer_store_dwordx4 v[40:43], v{L16}, s[8:11], s32 offen sc1
    buffer_store_dwordx4 v[40:43], v{L16}, s[8:11], s32 offen offset:1024 sc1
    s_lshl_b32 s32, s31, 1
    s_add_u32 s32, s32, s30
    s_and_b32 s33, s6, 1
    s_add_u32 s32, s32, s33
    s_lshl_b32 s32, s32, 10
    s_add_u32 s32, s32, {WS_AH + 32*1024}
    buffer_store_dwordx4 v[40:43], v{L16}, s[8:11], s32 offen sc1
    """)

def code_prefetch(a, lbl):
    a("s_getpc_b64 s[34:35]")
    a.label(lbl)
    a(f"""
    s_sub_u32 s34, s34, {lbl} - L_code_begin
    s_subb_u32 s35, s35, 0
    v_lshlrev_b32 v46, 7, v1
    """)
    for i in range(5):
        a(f"v_min_u32 v47, L_code_end - L_code_begin - 4, v46")
        a(f"global_load_dword v{160+i}, v47, s[34:35]")
        a("v_add_u32 v46, 8192, v46")

def input_prefetch(a):
    bufs = [(44, S*D*2), (46, D*D*2), (56, D*F*2), (48, D*DH*2), (50, D*DH*2)]
    a("""
    s_lshl_b32 s30, s2, 2
    s_add_u32 s30, s30, s6
    s_mov_b32 s31, s30
    """)
    a(f"s_mov_b32 s24, s44\ns_mov_b32 s25, s45\ns_mov_b32 s26, {bufs[0][1]}")
    first = 0
    for p, n in bufs:
        if first:
            a(f"""
            s_sub_u32 s32, s30, {first}
            s_cselect_b32 s31, s31, s32
            s_cselect_b32 s24, s24, s{p}
            s_cselect_b32 s25, s25, s{p+1}
            s_cselect_b32 s26, s26, {n}
            """)
        first += (n + 8191) // 8192
    assert first <= 1024
    a("""
    s_mov_b32 s27, 0x00020000
    s_lshl_b32 s31, s31, 13
    v_lshlrev_b32 v47, 7, v1
    buffer_load_dword v165, v47, s[24:27], s31 offen
    """)

def tlb_touch(a):
    a(f"v_lshlrev_b32 v47, {TLBS}, v1")
    a("buffer_load_dword v166, v47, s[8:11], 0 offen")
    srd(a, 24, 60, S * D * 2)
    a("buffer_load_dword v167, v47, s[24:27], 0 offen")

def cs_issue(a):
    a(f"""
    s_cmp_lt_u32 s22, 10
    s_cselect_b32 s24, s46, s56
    s_cselect_b32 s25, s47, s57
    s_mov_b32 s26, {D*F*2}
    s_cselect_b32 s26, {D*D*2}, s26
    s_mov_b32 s27, 0x00020000
    s_mov_b32 s34, 3072
    s_cselect_b32 s34, 1280, s34
    s_sub_u32 s35, s22, 10
    s_cselect_b32 s35, s22, s35
    s_lshl_b32 s35, s35, 7
    s_mul_i32 s30, s6, 160
    s_mul_i32 s30, s30, s34
    s_add_u32 s30, s30, s35
    s_lshl_b32 s31, s34, 3
    v_mul_u32_u24 v4, s34, v2
    v_lshl_add_u32 v4, v3, 4, v4
    """)
    for i in range(20):
        a(f"buffer_load_dwordx4 {vr(48+4*i,4)}, v4, s[24:27], s30 offen{NTH}")
        a("s_add_u32 s30, s30, s31")

def cs_accum(a, scr):
    for i in range(8): a(f"v_mov_b32 v{128+i}, 0")
    for i in range(20):
        for k in range(4):
            r = 48 + 4 * i + k
            a(f"v_lshlrev_b32 v{136+2*k}, 16, v{r}")
            a(f"v_and_b32 v{137+2*k}, 0xffff0000, v{r}")
        for k in range(4):
            a(f"v_pk_add_f32 {vr(128+2*k,2)}, {vr(128+2*k,2)}, {vr(136+2*k,2)}")
    a(f"""
    s_lshl_b32 s36, s6, 11
    s_add_u32 s36, s36, {scr}
    v_lshlrev_b32 v5, 5, v1
    v_add_u32 v5, s36, v5
    ds_write_b128 v5, v[128:131]
    ds_write_b128 v5, v[132:135] offset:16
    s_waitcnt lgkmcnt(0)
    """)

def cs_final(a, scr):
    a(f"v_lshlrev_b32 v5, 2, v1\nv_add_u32 v6, {scr}, v5")
    for k in range(32):
        a(f"ds_read_b32 v{48+k}, v6 offset:{k*256}")
        if k % 8 == 7: a("s_waitcnt lgkmcnt(4)")
    a("s_waitcnt lgkmcnt(0)")
    for stp in (16, 8, 4, 2, 1):
        for i in range(stp): a(f"v_add_f32 v{48+i}, v{48+i}, v{48+stp+i}")
    a(f"""
    v_cvt_pk_bf16_f32 v49, v48, v48
    v_and_b32 v49, 0xffff0000, v49
    v_sub_f32 v49, v48, v49
    v_cvt_pk_bf16_f32 v50, v48, v49
    v_mov_b32 v51, s64
    v_lshlrev_b32 v5, 3, v1
    s_lshl_b32 s30, s22, 9
    s_add_u32 s30, s30, {WS_CSUM}
    buffer_store_dwordx2 v[50:51], v5, s[8:11], s30 offen sc1
    """)

def cs_last(a, scr, lbl):
    a(f"""
    v_mov_b32 v6, {CNT}
    v_mov_b32 v7, 1
    s_mov_b64 exec, 1
    ds_add_rtn_u32 v8, v6, v7 offset:{C_CS}
    s_waitcnt lgkmcnt(0)
    v_readfirstlane_b32 s27, v8
    s_mov_b64 exec, -1
    s_cmp_lg_u32 s27, 3
    s_cbranch_scc1 {lbl}
    """)
    cs_final(a, scr)
    a.label(lbl)

def row_lut(kind):
    L = []
    for half in range(2):
        for j in range(8):
            if kind == "w2": L.append((j & 3) + 8 * (j >> 2) + 4 * half)
            if kind == "head": L.append(ODIM[half][j])
            if kind == "left": L.append(20 * (j >> 1) + ODIM[half][8 + (j & 1)])
    return pack_bytes(L[:8]) + pack_bytes(L[8:])
RL_LDS = 4 * STAGE
GACC = 16
GFB = 96
LOFF = R_KA
def cnt_add(a, off, va=102, vo=103):
    a(f"""
    s_mov_b64 exec, 1
    ds_add_u32 v{va}, v{vo} offset:{off}
    s_mov_b64 exec, -1
    """)

def cnt_init(a):
    a(f"v_mov_b32 v32, {CNT}")
    for i in range(4): a(f"v_mov_b32 v{36+i}, 0")
    for o in range(0, 96, 16): a(f"ds_write_b128 v32, v[36:39] offset:{o}")

def kv_round(a):
    a(f"""
    s_mov_b32 m0, s22
    s_add_u32 s22, s22, 4096
    buffer_load_dwordx4 v{L16}, s[8:11], s23 offen sc1 lds
    s_add_u32 s23, s23, 4096
    """)

def kv_first(a):
    a(f"""
    v_mov_b32 v0, {CNT}
    v_mov_b32 v5, 1
    v_lshlrev_b32 v6, 2, v1
    s_mov_b32 s30, {WS_KMAX}
    buffer_load_dword v7, v6, s[8:11], s30 offen sc1
    """)
    for i in range(12): kv_round(a)
    a("s_waitcnt vmcnt(12)")
    for sh in (1, 2, 4, 8):
        a("s_nop 1")
        a(f"v_max_f32_dpp v7, v7, v7 row_shr:{sh} row_mask:0xf bank_mask:0xf bound_ctrl:0")
    a(f"""
    s_nop 1
    v_readlane_b32 s32, v7, 15
    v_readlane_b32 s33, v7, 31
    v_readlane_b32 s34, v7, 47
    v_readlane_b32 s35, v7, 63
    s_nop 3
    s_max_u32 s32, s32, s33
    s_max_u32 s34, s34, s35
    s_max_u32 s32, s32, s34
    v_mov_b32 v7, s32
    ds_write_b32 v0, v7 offset:{C_KMAX}
    s_waitcnt vmcnt(0) lgkmcnt(0)
    """)
    cnt_add(a, C_KVA, 0, 5)

def gen_phase_p(a, pf):
    a(f"""
    s_lshr_b32 s22, s20, 1
    s_lshl_b32 s22, s22, 2
    s_and_b32 s23, s21, 3
    s_add_u32 s22, s22, s23
    s_and_b32 s23, s20, 1
    s_mul_i32 s23, s23, 5
    s_lshr_b32 s36, s21, 2
    s_add_u32 s23, s23, s36
    s_add_u32 s23, s23, 2
    s_lshl_b32 s30, s20, 1
    s_and_b32 s31, s21, 1
    s_add_u32 s30, s30, s31
    s_lshr_b32 s31, s21, 1
    s_cmp_lt_u32 s21, 8                     ; slots 0-7: Q of the tokens whose attention runs on ids with the same id%8
    s_cselect_b32 s22, s30, s22
    s_cselect_b32 s23, s31, s23
    s_lshl_b32 s29, s22, 2
    s_add_u32 s29, s29, s6
    s_cmp_eq_u32 s7, 0
    s_cbranch_scc1 L_p_cwave
    s_cmp_eq_u32 s7, 1
    s_cbranch_scc1 L_p_idle
    s_setprio 3
    s_and_b32 s39, s21, 3
    s_mul_i32 s39, s39, {3 if ROT else 0}
    s_add_u32 s39, s39, {'s36' if ROT else 0}
    s_sub_u32 s38, s39, 10
    s_cselect_b32 s39, s39, s38
    v_lshrrev_b32 v2, 3, v1
    v_mul_u32_u24 v2, 1280, v2
    v_lshrrev_b32 v3, 4, v1
    v_and_b32 v32, 7, v1
    v_xor_b32 v33, v32, v3
    v_lshl_add_u32 v4, v33, 4, v2
    v_xor_b32 v33, 4, v33
    v_lshl_add_u32 v5, v33, 4, v2
    s_mul_i32 s42, s29, {32*1280}
    s_lshl_b32 s40, s6, 12
    s_add_u32 s40, s40, {2*STAGE}
    s_lshl_b32 s41, s6, 10
    s_add_u32 s41, s41, {16384 + 2*STAGE}
    s_cmp_lt_u32 s23, 4
    s_mov_b32 s34, 3072
    s_cselect_b32 s34, 1280, s34            ; pitch
    s_sub_u32 s35, s23, 4
    s_cselect_b32 s35, s23, s35
    s_mul_i32 s35, s35, 320
    s_lshl_b32 s30, s6, 6
    s_lshl_b32 s31, s34, 6
    """)
    for j in range(5):
        piece_addr(a, j, 4, 34, 40 + j)
        a(f"""
        v_mul_u32_u24 v33, s34, v34
        v_lshl_add_u32 v33, v{40+j}, 4, v33
        v_add_u32 v{6+j}, s35, v33
        """)
    a("s_cmp_lg_u32 s23, 13\ns_cbranch_scc1 L_p_allp")
    for j in range(5):
        a(f"""
        v_cmp_gt_u32 vcc, 12, v{40+j}
        v_mov_b32 v34, 0x7f000000
        s_nop 0
        v_cndmask_b32 v{6+j}, v34, v{6+j}, vcc
        """)
    a.label("L_p_allp")
    a("s_waitcnt lgkmcnt(0)")
    srd(a, 12, 44, S * D * 2)
    a(f"""
    s_cmp_lt_u32 s23, 4
    s_cselect_b32 s24, s46, s56
    s_cselect_b32 s25, s47, s57
    s_mov_b32 s26, {D*F*2}
    s_cselect_b32 s26, {D*D*2}, s26
    s_mov_b32 s27, 0x00020000
    s_mov_b32 s33, 0
    """)
    a.label("L_p_fill")
    issue_chunk(a)
    a(f"""
    s_add_u32 s33, s33, 1
    s_cmp_lt_u32 s33, {LEAD}
    s_cbranch_scc1 L_p_fill
    """)
    a.label("L_p_lloop")
    a(f"s_waitcnt vmcnt({9*(LEAD-1)})")
    a("s_barrier")
    issue_chunk(a)
    a(f"""
    s_add_u32 s33, s33, 1
    s_cmp_lt_u32 s33, 10
    s_cbranch_scc1 L_p_lloop
    """)
    common_srds(a)
    for i in range(LEAD):
        a(f"s_waitcnt vmcnt({9*(LEAD-1-i)})")
        a("s_barrier")
    a("s_mov_b32 s39, 4")
    a("s_branch L_a_start")
    a.label("L_p_idle")
    cnt_init(a)
    a("v_mov_b32 v44, 0")
    a("s_waitcnt lgkmcnt(0)")
    if PREF: input_prefetch(a)
    common_srds(a)
    a("""
    s_or_b32 s30, s2, s6
    s_cmp_lg_u32 s30, 0
    s_cbranch_scc1 L_p_idle1
    """ + ("" if os.environ.get('ETAG') else "s_memrealtime s[64:65]                  ; launch tag: only tells this launch's flags from stale ones") + """
    s_waitcnt lgkmcnt(0)
    s_or_b32 s64, s64, 1
    v_mov_b32 v46, s64
    v_mov_b32 v47, 0
    s_mov_b64 exec, 1
    buffer_atomic_cmpswap v[46:47], v44, s[16:19], 0 offen sc1
    s_mov_b64 exec, -1
    s_nop 1
    """)
    a.label("L_p_idle1")
    a("""
    s_setprio 2
    s_and_b32 s30, s21, 7
    s_or_b32 s30, s30, s6
    s_cmp_lg_u32 s30, 0
    s_cbranch_scc1 L_p_idle1b
    """)
    code_prefetch(a, "L_p_pc")
    a.label("L_p_idle1b")
    if TLBS:
        a("s_cmp_lg_u32 s6, 2\ns_cbranch_scc1 L_p_notlb")
        tlb_touch(a)
        a.label("L_p_notlb")
    a(f"""
    s_lshr_b32 s30, s22, 1
    s_sub_u32 s31, s23, 13
    s_or_b32 s37, s30, s31
    s_add_u32 s22, s22, 32
    s_lshr_b32 s38, s2, 2
    s_mul_i32 s38, s38, 3
    s_add_u32 s38, s38, s6
    s_sub_u32 s38, s38, 1                   ; ks
    s_cmp_eq_u32 s6, 0
    s_cselect_b32 s38, 999, s38
    s_and_b32 s39, s2, 3                    ; cg
    s_cmp_lt_u32 s38, 40
    s_cselect_b32 s12, s52, s58
    s_cselect_b32 s13, s53, s59
    s_mov_b32 s14, {F*D*2}
    s_cselect_b32 s14, {D*D*2}, s14
    s_mov_b32 s15, 0x00020000
    """)
    w2, hd, lf = row_lut("w2"), row_lut("head"), row_lut("left")
    for k in range(4):
        a(f"""
        s_mov_b32 s{40+k}, {w2[k]:#x}
        s_cmp_lt_u32 s38, 40
        s_cselect_b32 s{40+k}, {lf[k]:#x}, s{40+k}
        s_cmp_lt_u32 s38, 32
        s_cselect_b32 s{40+k}, {hd[k]:#x}, s{40+k}
        """)
    a(f"""
    s_sub_u32 s34, s38, 40
    s_lshl_b32 s34, s34, 4
    s_sub_u32 s35, s38, 32
    s_mul_i32 s35, s35, 80
    s_cmp_lt_u32 s38, 40
    s_cselect_b32 s34, s35, s34
    s_mul_i32 s35, s38, 20
    s_cmp_lt_u32 s38, 32
    s_cselect_b32 s34, s35, s34
    s_mul_i32 s34, s34, 1280
    s_mul_i32 s35, s39, 320
    s_add_u32 s33, s34, s35
    v_mov_b32 v36, s40
    v_mov_b32 v37, s42
    s_mov_b32 s30, 0
    """)
    for j in range(5):
        piece_addr(a, j, 1, 34, 35)
        a(f"""
        v_and_b32 v33, 7, v34
        v_or_b32 v33, 0x0c0c0c00, v33
        v_perm_b32 v38, s41, v36, v33
        v_perm_b32 v39, s43, v37, v33
        v_cmp_lt_u32 vcc, 7, v34
        s_nop 1
        v_cndmask_b32 v38, v38, v39, vcc
        v_mul_u32_u24 v38, 1280, v38
        v_lshl_add_u32 v{8+j}, v35, 4, v38
        """)
    cm = [5 * (4 * (g & 1) + (g >> 1)) for g in range(8)]
    lo, hi = pack_bytes(cm)
    a(f"""
    s_mul_i32 s29, s6, 5120
    s_add_u32 s29, s29, {RL_LDS - 5120}
    """)
    BARN[0] = 0
    ibar(a)
    a("""
    buffer_load_dword v46, v44, s[16:19], 0 offen sc1
    s_cmp_lg_u32 s37, 0
    s_cbranch_scc1 L_p_idle2
    v_lshrrev_b32 v2, 3, v1
    v_and_b32 v3, 7, v1
    """)
    cs_issue(a)
    a.label("L_p_idle2")
    for i in range(4): ibar(a)
    a("""
    s_waitcnt vmcnt(0)
    v_readfirstlane_b32 s64, v46
    s_cmp_lg_u32 s64, 0
    s_cbranch_scc1 L_p_tag2_ok
    """)
    get_tag(a, "L_p_tag2", 44, 46)
    a("s_cmp_lg_u32 s6, 0\ns_cbranch_scc1 L_p_nox")
    publish_xcc(a)
    warm_q(a)
    a.label("L_p_nox")
    a("""
    s_cmp_lg_u32 s37, 0
    s_cbranch_scc1 L_p_idle2b
    """)
    cs_accum(a, RL_LDS)
    cs_last(a, RL_LDS, "L_p_idle2b")
    a(f"""
    s_cmp_ge_u32 s38, {NKS}
    s_cbranch_scc1 L_p_norl2
    """)
    for j in range(5):
        a(f"s_add_u32 m0, s29, {j*1024}" if j else "s_mov_b32 m0, s29")
        a("s_nop 0")
        a(f"buffer_load_dwordx4 v{8+j}, s[12:15], s33 offen{NTH} lds")
    a.label("L_p_norl2")
    cm = [4 * (g & 1) + (g >> 1) for g in range(8)]
    lo, hi = pack_bytes(cm)
    a(f"""
    v_bfe_u32 v33, v1, 4, 1
    v_and_b32 v34, 3, v1
    v_lshl_add_u32 v33, v33, 2, v34
    v_or_b32 v33, 0x0c0c0c00, v33
    v_mov_b32 v34, {lo:#x}
    v_mov_b32 v35, {hi:#x}
    v_perm_b32 v34, v35, v34, v33
    v_lshrrev_b32 v35, 5, v1
    v_bfe_u32 v32, v1, 2, 2
    v_lshl_add_u32 v32, v35, 3, v32
    v_mul_u32_u24 v32, 320, v32
    v_lshl_add_u32 v13, v34, 3, v32
    v_add_u32 v13, s29, v13
    """)
    for i in range(4): ibar(a)
    a(f"""
    s_cmp_ge_u32 s38, {NKS}
    s_cbranch_scc1 L_p_norl3
    s_mul_i32 s30, s39, {NKS}
    s_add_u32 s30, s30, s38
    s_mul_i32 s30, s30, 5120
    s_add_u32 s30, s30, {WS_W}
    s_add_u32 s31, s30, 4096
    s_waitcnt vmcnt(0)
    """)
    for ct in range(5):
        a(f"ds_read_b64_tr_b16 {vr(48+4*ct,2)}, v13 offset:{ct*64}")
        a(f"ds_read_b64_tr_b16 {vr(50+4*ct,2)}, v13 offset:{ct*64 + 4*320}")
    for ct in range(5):
        a(f"s_waitcnt lgkmcnt({8-2*ct})")
        if ct < 4: a(f"buffer_store_dwordx4 {vr(48+4*ct,4)}, v{L16}, s[8:11], s30 offen offset:{ct*1024} sc1")
        else: a(f"buffer_store_dwordx4 {vr(48+4*ct,4)}, v{L16}, s[8:11], s31 offen sc1")
    a.label("L_p_norl3")
    ibar(a)
    ibar_dump(a)
    a("s_mov_b32 s67, 0")
    a("s_setprio 0")
    a("s_branch L_a_start")
    a.label("L_p_cwave")
    a(f"""
    v_and_b32 v2, 31, v1
    v_lshrrev_b32 v3, 5, v1
    v_bfe_u32 v40, v1, 1, 3
    v_xor_b32 v40, v40, v3
    s_lshl_b32 s30, s6, 12
    s_add_u32 s30, s30, {2*STAGE}
    v_lshlrev_b32 v41, 7, v2
    v_add_u32 v41, s30, v41
    """)
    for ks in range(4):
        a(f"v_xor_b32 v42, {2*ks}, v40")
        a(f"v_lshl_add_u32 v{XA+ks}, v42, 4, v41")
    a(f"""
    v_bfe_u32 v40, v1, 2, 2
    v_lshl_add_u32 v40, v3, 3, v40
    v_mul_u32_u24 v40, 320, v40
    v_add_u32 v40, {16384 + 2*STAGE}, v40
    v_bfe_u32 v41, v1, 4, 1
    v_and_b32 v42, 3, v1
    v_lshl_add_u32 v41, v41, 2, v42
    v_or_b32 v41, 0x0c0c0c00, v41
    v_lshrrev_b32 v43, 2, v2
    v_or_b32 v43, 0x0c0c0c00, v43
    v_lshlrev_b32 v44, 3, v42
    s_mul_i32 s32, s23, 1280
    s_add_u32 s32, s32, {WS_CSUM}
    v_add_u32 v44, s32, v44
    """)
    for u in range(5):
        qlo, qhi = pack_bytes(quadmap("Q", u))
        hlo, hhi = pack_bytes(quadmap("H", u))
        a(f"""
        s_mov_b32 s30, {hlo:#x}
        s_mov_b32 s31, {hhi:#x}
        s_cmp_lt_u32 s23, 4
        s_cselect_b32 s30, {qlo:#x}, s30
        s_cselect_b32 s31, {qhi:#x}, s31
        v_mov_b32 v45, s30
        v_perm_b32 v46, s31, v45, v41
        v_lshl_add_u32 v{WA+u}, v46, 3, v40
        v_perm_b32 v46, s31, v45, v43
        v_lshl_add_u32 v{CSA+u}, v46, 5, v44
        """)
    for i in range(80): a(f"v_mov_b32 v{ACC+i}, 0")
    a(f"""
    v_lshlrev_b32 v13, 4, v2                ; (l&31)*16
    s_lshl_b32 s36, s29, 9
    s_add_u32 s36, s36, {WS_STAT}
    s_mov_b32 s33, 0                        ; chunk
    s_mov_b32 s34, {2*STAGE}                ; slot*STAGE
    s_mul_i32 s37, s29, {MBS}
    s_and_b32 s31, s23, 3
    s_lshl_b32 s31, s31, 3
    s_add_u32 s37, s37, s31
    s_add_u32 s37, s37, {WS_MB + L_CLR*MBS}
    s_cmp_eq_u32 s23, 13
    s_cbranch_scc0 L_p_full
    v_mov_b32 v{CSA+3}, v{CSA}
    v_mov_b32 v{CSA+4}, v{CSA}
    """)
    a.label("L_p_full")
    a("s_waitcnt lgkmcnt(0)")
    common_srds(a)
    a("s_barrier")
    pf.stamp()
    a("s_waitcnt lgkmcnt(0)")
    for r in read_list(0, 0): a(r)
    def stat_loads():
        a(f"buffer_load_dword v0, off, s[16:19], 0 sc1")
        a(f"buffer_load_dwordx2 {vr(XF,2)}, off, s[8:11], s37 offset:64 sc1")
        a(f"buffer_load_dwordx4 {vr(STV,4)}, v13, s[8:11], s36 offen sc1")
        for u in range(5):
            a(f"buffer_load_dwordx2 {vr(CSP[u],2)}, v{CSA+u}, s[8:11], 0 offen sc1")
    a.lines.append(".p2align 6")
    a.label("L_p_loop")
    for ks in range(4):
        b = ks & 1
        if ks == 1:
            a(f"s_cmp_lg_u32 s33, {STCH}")
            a("s_cbranch_scc1 L_p_nost")
            stat_loads()
            a.label("L_p_nost")
        if ks == 3:
            a(f"""
            s_add_u32 s34, s34, {STAGE}
            s_cmp_ge_u32 s34, {4*STAGE}
            s_mov_b32 s35, {STAGE}
            s_cselect_b32 s35, {(-3*STAGE) & 0xffffffff:#x}, s35
            s_cselect_b32 s34, 0, s34
            """)
            for r in list(range(XA, XA + 4)) + list(range(WA, WA + 5)):
                a(f"v_add_u32 v{r}, s35, v{r}")
            a("s_cmp_eq_u32 s33, 9")
            a("s_cbranch_scc1 L_p_last")
            if LEAD > 2: a("s_waitcnt lgkmcnt(0)")
            a("s_barrier")
        rl = read_list((ks + 1) & 3, b ^ 1)
        per = [3, 2, 2, 2, 2]
        for u in range(5):
            a(f"s_waitcnt lgkmcnt({8 if u == 0 else 9})")
            a(f"v_mfma_f32_32x32x16_bf16 {vr(ACC+16*u,16)}, {vr(WF[b]+4*u,4)}, {vr(XF+4*ks,4)}, {vr(ACC+16*u,16)}")
            for _ in range(per[u]): a(rl.pop(0))
    a("s_add_u32 s33, s33, 1")
    a("s_branch L_p_loop")
    a.label("L_p_last")
    a(f"v_mov_b32 v44, {CNT}\nv_mov_b32 v45, 1")
    a("s_waitcnt lgkmcnt(0)")
    cnt_add(a, C_RING, 44, 45)
    for u in range(5):
        a(f"v_mfma_f32_32x32x16_bf16 {vr(ACC+16*u,16)}, {vr(WF[1]+4*u,4)}, {vr(XF+12,4)}, {vr(ACC+16*u,16)}")
    pf.stamp()
    a("s_setprio 3")
    a("s_mov_b32 s28, 0")
    a.label("L_p_stchk")
    a(f"""
    s_waitcnt vmcnt(0)
    v_readfirstlane_b32 s64, v0
    v_min_u32 v48, v{STV+3}, v{CSP[0]+1}
    v_max_u32 v49, v{STV+3}, v{CSP[0]+1}
    v_min3_u32 v48, v48, v{CSP[1]+1}, v{CSP[2]+1}
    v_max3_u32 v49, v49, v{CSP[1]+1}, v{CSP[2]+1}
    v_min3_u32 v48, v48, v{CSP[3]+1}, v{CSP[4]+1}
    v_max3_u32 v49, v49, v{CSP[3]+1}, v{CSP[4]+1}
    v_cmp_ne_u32 vcc, s64, v48
    v_cmp_ne_u32 s[30:31], s64, v49
    s_or_b64 vcc, vcc, s[30:31]
    s_cmp_eq_u32 s64, 0
    s_cselect_b32 vcc_lo, -1, vcc_lo
    s_cmp_eq_u64 vcc, 0
    s_cbranch_scc1 L_p_havest
    s_add_u32 s28, s28, 1
    s_cmp_ge_u32 s28, {SPIN}
    s_cbranch_scc1 L_p_havest
    s_sleep 2
    """)
    stat_loads()
    a("s_branch L_p_stchk")
    a.label("L_p_havest")
    st(a, 90)
    a(f"""
    v_mov_b32 v{STV+3}, 0
    s_mov_b32 exec_lo, 0
    v_mov_b32 v{STV+2}, 0
    s_mov_b64 exec, -1
    """)
    for u in range(5): a(f"v_mov_b32 v{CSP[u]+1}, 0")
    a("s_nop 1")
    for u in (4, 0, 2, 3, 1):
        a(f"v_mfma_f32_32x32x8_bf16 {vr(ACC+16*u,16)}, {vr(CSP[u],2)}, {vr(STV+2,2)}, {vr(ACC+16*u,16)}")
    a(f"""
    s_cmp_ge_u32 s23, 4
    s_cbranch_scc1 L_p_epi_h
    s_lshl_b32 s30, s29, 2
    s_add_u32 s30, s30, s23
    s_mul_i32 s30, s30, {QBLK}
    s_add_u32 s30, s30, {WS_Q}
    v_mul_f32 v86, {f32bits(QSCALE):#x}, v{STV}
    v_mov_b32 v87, v86
    """)
    a(f"""
    v_readfirstlane_b32 s32, v{XF}
    v_readfirstlane_b32 s33, v{XF+1}
    s_nop 1
    s_xor_b32 s32, s32, s64
    s_xor_b32 s33, s33, s54
    s_or_b32 s55, s32, s33
    s_mul_i32 s34, s29, {MBS}
    s_lshl_b32 s31, s23, 7
    s_add_u32 s34, s34, s31
    s_add_u32 s34, s34, {WS_MB + L_CLR*MBS + 128}
    """)
    for u in range(5):
        for i in range(8):
            r = ACC + 16 * u + 2 * i
            a(f"v_pk_mul_f32 {vr(r,2)}, {vr(r,2)}, v[86:87]")
        for i in range(8):
            r = ACC + 16 * u + 2 * i
            a(f"v_cvt_pk_bf16_f32 v{44+8*u+i}, v{r}, v{r+1}")
        two_way(a, f"L_p_qs{u}", [f"buffer_store_dwordx4 {vr(44+8*u,4)}, v{L16}, s[8:11], s30 offen",
                                  f"buffer_store_dwordx4 {vr(48+8*u,4)}, v{L16}, s[8:11], s30 offen offset:1024"])
        a(f"s_add_u32 s30, s30, 2048")
    st(a, 92)
    a(f"v_mov_b32 v42, {CNT}\nv_mov_b32 v43, 1")
    cnt_add(a, C_QLD, 42, 43)
    a("""
    v_mov_b32 v40, s64
    s_mov_b64 exec, 1
    s_waitcnt vmcnt(0)
    """)
    two_way(a, "L_p_qf", ["buffer_store_dword v40, off, s[8:11], s34"])
    a("s_mov_b64 exec, -1")
    a("s_mov_b32 s67, 0\ns_branch L_a_start")
    a.label("L_p_epi_h")
    a(f"""
    s_mul_i32 s30, s29, {NKS}
    s_sub_u32 s31, s23, 4
    s_mul_i32 s31, s31, 10
    s_add_u32 s30, s30, s31
    s_add_u32 s30, s30, 40
    s_lshl_b32 s30, s30, 10
    s_add_u32 s65, s30, {WS_AH}
    s_mov_b32 s67, 1
    s_mov_b32 s69, s23
    v_mul_f32 v40, {f32bits(-math.log2(math.e)):#x}, v{STV}
    v_mov_b32 v41, v40
    v_mov_b32 v42, v{STV+1}
    v_mov_b32 v43, v{STV+1}
    s_nop 1
    """)
    a("s_cmp_eq_u32 s23, 13")
    a("s_cbranch_scc1 L_p_h2")
    for u in (4, 3, 2, 1, 0):
        if u == 2: a.label("L_p_h2")
        T = 64
        for i in range(8):
            r = ACC + 16 * u + 2 * i
            a(f"v_pk_mul_f32 {vr(T+2*i,2)}, {vr(r,2)}, v[40:41]")
        for i in range(16): a(f"v_exp_f32 v{T+i}, v{T+i}")
        for i in range(8): a(f"v_pk_fma_f32 {vr(T+2*i,2)}, {vr(T+2*i,2)}, v[42:43], v[42:43]")
        for i in range(16): a(f"v_rcp_f32 v{T+i}, v{T+i}")
        for i in range(8):
            r = ACC + 16 * u + 2 * i
            a(f"v_pk_mul_f32 {vr(T+2*i,2)}, {vr(T+2*i,2)}, {vr(r,2)}")
        for i in range(8):
            a(f"v_cvt_pk_bf16_f32 v{128+8*u+i}, v{T+2*i}, v{T+2*i+1}")
        if HMODE == 0:
            a(f"s_add_u32 s30, s65, {2048*u}")
            a(f"buffer_store_dwordx4 {vr(128+8*u,4)}, v{L16}, s[8:11], s30 offen sc1")
            a(f"buffer_store_dwordx4 {vr(132+8*u,4)}, v{L16}, s[8:11], s30 offen offset:1024 sc1")
    a("s_branch L_a_start")

BARN = [0]
def ibar(a):
    a("s_barrier")
    if PROFON[0]:
        a(f"s_memtime s[84:85]\ns_waitcnt lgkmcnt(0)\nv_mov_b32 v{144+BARN[0]}, s84")
        BARN[0] += 1
def ibar_dump(a):
    if not PROFON[0]: return
    a("""
    s_load_dwordx2 s[84:85], s[0:1], 40
    s_lshl_b32 s86, s2, 2
    s_add_u32 s86, s86, s6
    s_lshl_b32 s86, s86, 6
    s_add_u32 s86, s86, 0x40000
    v_mov_b32 v143, s86
    v_mov_b32 v155, s72
    s_waitcnt lgkmcnt(0)
    global_store_dwordx4 v143, v[144:147], s[84:85]
    global_store_dwordx4 v143, v[148:151], s[84:85] offset:16
    global_store_dwordx4 v143, v[152:155], s[84:85] offset:32
    s_nop 1
    """)
PROFON = [False]
DIAG = os.environ.get('DIAG') is not None
def st(a, r):
    if PROFON[0]: a(f"s_memtime s[{r}:{r+1}]")

def common_srds(a):
    srd(a, 8, 4, WS_SIZE)
    srd(a, 16, 62, 256)

XN_W = 81920
CS_SCR = XN_W + 51200

def gen_helper_p(a, pf):
    a.label("L_h_start")
    a(f"""
    s_sub_u32 s21, s21, 28
    s_lshl_b32 s21, s21, 3
    s_add_u32 s21, s21, s20                 ; h
    v_lshrrev_b32 v2, 3, v1                 ; r
    v_and_b32 v3, 7, v1                     ; c
    s_cmp_eq_u32 s7, 2
    s_cbranch_scc1 L_h_cs
    v_mul_u32_u24 v4, 1280, v2
    v_lshl_add_u32 v4, v3, 4, v4
    s_lshl_b32 s22, s21, 3
    s_add_u32 s22, s22, s66
    s_mul_i32 s30, s22, {8*1280}
    s_waitcnt lgkmcnt(0)
    """)
    srd(a, 12, 44, S * D * 2)
    for i in range(10):
        a(f"buffer_load_dwordx4 {vr(48+4*i,4)}, v4, s[12:15], s30 offen offset:{i*128}{NTH}")
    if PREF:
        a("s_cmp_lg_u32 s7, 1\ns_cbranch_scc1 L_h_nopre")
        input_prefetch(a)
        a.label("L_h_nopre")
    common_srds(a)
    a("v_mov_b32 v44, 0")
    get_tag(a, "L_h_tag0", 44, 46)
    a("s_cmp_lg_u32 s66, 4\ns_cbranch_scc1 L_h_nox")
    publish_xcc(a)
    warm_q(a)
    a.label("L_h_nox")
    a.label("L_h_st")
    st(a, 74)
    a("""
    v_mov_b32 v88, 0
    v_mov_b32 v89, 0
    v_mov_b32 v90, 0x3f803f80
    """)
    for i in range(40):
        a(f"v_dot2c_f32_bf16 v88, v{48+i}, v90")
        a(f"v_dot2c_f32_bf16 v89, v{48+i}, v{48+i}")
    a("s_nop 2")
    for ctl in ("quad_perm:[1,0,3,2]", "quad_perm:[2,3,0,1]", "row_half_mirror"):
        a(f"""
        v_add_f32_dpp v88, v88, v88 {ctl} row_mask:0xf bank_mask:0xf
        v_add_f32_dpp v89, v89, v89 {ctl} row_mask:0xf bank_mask:0xf
        s_nop 1
        """)
    a(f"""
    v_mul_f32 v88, {f32bits(1.0/D):#x}, v88
    v_mul_f32 v89, {f32bits(1.0/D):#x}, v89
    v_fma_f32 v89, -v88, v88, v89
    v_max_f32 v89, 0, v89
    """)
    bf16_round(a, 89, 89)
    a(f"v_add_f32 v89, {f32bits(1e-5):#x}, v89")
    bf16_round(a, 89, 89)
    a("v_sqrt_f32 v89, v89")
    a("s_nop 0")
    bf16_round(a, 93, 89)
    a(f"""
    v_rcp_f32 v92, v93
    v_sub_f32 v88, 0, v88
    v_cvt_pk_bf16_f32 v94, v88, v88
    v_mov_b32 v95, s64
    v_lshlrev_b32 v5, 4, v2
    s_lshl_b32 s30, s22, 7
    s_add_u32 s30, s30, {WS_STAT}
    s_mov_b32 exec_lo, 0x01010101
    s_mov_b32 exec_hi, 0x01010101
    buffer_store_dwordx4 v[92:95], v5, s[8:11], s30 offen sc1
    s_mov_b64 exec, -1
    v_and_b32 v98, 0xffff0000, v94
    v_mul_f32 v98, v98, v92
    v_mov_b32 v99, v98
    v_mov_b32 v96, v92
    v_mov_b32 v97, v92
    s_lshl_b32 s30, s66, 3
    v_add_u32 v6, s30, v2
    v_bfe_u32 v7, v6, 1, 3
    v_xor_b32 v7, v7, v3
    v_lshlrev_b32 v6, 7, v6
    v_lshl_add_u32 v6, v7, 4, v6
    v_add_u32 v7, 0x10000, v6
    """)
    for i in range(10):
        for k in range(4):
            r = 48 + 4 * i + k
            t = 100 + 2 * k
            a(f"v_lshlrev_b32 v{t}, 16, v{r}")
            a(f"v_and_b32 v{t+1}, 0xffff0000, v{r}")
        for k in range(4):
            t = 100 + 2 * k
            a(f"v_pk_fma_f32 {vr(t,2)}, {vr(t,2)}, v[96:97], v[98:99]")
        for k in range(4):
            t = 100 + 2 * k
            a(f"v_cvt_pk_bf16_f32 v{48+4*i+k}, v{t}, v{t+1}")
        a(f"ds_write_b128 v{6 if i < 8 else 7}, {vr(48+4*i,4)} offset:{(i*8192) & 0xffff}")
    a("""
    s_waitcnt lgkmcnt(0)
    s_barrier                               ; B1
    """)
    st(a, 76)
    a("""
    s_cmp_eq_u32 s7, 0
    s_cbranch_scc1 L_h_kv
    s_barrier                               ; B2
    s_mov_b32 s67, 0
    s_branch L_a_start
    """)
    gen_h_colsum(a)
    gen_h_kv(a)

def gen_h_colsum(a):
    a.label("L_h_cs")
    a(f"""
    v_mov_b32 v32, {CNT}
    v_mov_b32 v36, 0
    v_mov_b32 v37, 0
    v_mov_b32 v38, 0
    v_mov_b32 v39, 0
    ds_write_b128 v32, v[36:39]
    ds_write_b128 v32, v[36:39] offset:16
    ds_write_b128 v32, v[36:39] offset:32
    ds_write_b128 v32, v[36:39] offset:48
    ds_write_b128 v32, v[36:39] offset:64
    ds_write_b128 v32, v[36:39] offset:80
    s_mov_b32 s22, s21                      ; block
    s_cmp_lg_u32 s6, 3
    s_cbranch_scc1 L_h_nopf
    """)
    code_prefetch(a, "L_h_pc")
    a.label("L_h_nopf")
    a("s_waitcnt lgkmcnt(0)")
    common_srds(a)
    if TLBS:
        a("s_cmp_lg_u32 s6, 2\ns_cbranch_scc1 L_h_notlb")
        tlb_touch(a)
        a.label("L_h_notlb")
    for m, p in ((0, 48), (1, 50)):
        srd(a, 12, p, D * DH * 2)
        a(f"s_lshl_b32 s30, s6, 10")
        for i in range(7):
            if i == 6:
                a("s_cmp_lg_u32 s6, 0")
                a(f"s_cbranch_scc1 L_h_dma{m}")
            a(f"s_add_u32 m0, s30, {XN_W + m*25600}")
            a("s_nop 0")
            a(f"buffer_load_dwordx4 v{L16}, s[12:15], s30 offen lds")
            a("s_add_u32 s30, s30, 4096")
        a.label(f"L_h_dma{m}")
    cs_issue(a)
    a("s_waitcnt vmcnt(20)")
    a("s_barrier                               ; B1")
    a("v_mov_b32 v44, 0")
    get_tag(a, "L_h_tag2", 44, 46)
    a("s_setprio 2")
    st(a, 90)
    cs_accum(a, CS_SCR)
    cs_last(a, CS_SCR, "L_h_csdone")
    st(a, 92)
    a("s_mov_b32 s39, 0")
    a("s_barrier                               ; B2")
    a("s_branch L_a_start")

def gen_h_kv(a):
    a.label("L_h_kv")
    a("s_setprio 3")
    a("v_mov_b32 v44, 0")
    klo, khi = pack_bytes([0, 2, 1, 3, 4, 0, 0, 0])
    vlo, vhi = pack_bytes([0, 1, 2, 3, 4, 0, 0, 0])
    a(f"""
    s_and_b32 s30, s6, 1                    ; tile
    s_lshr_b32 s31, s6, 1                   ; 0 = K, 1 = V
    s_lshl_b32 s29, s21, 1
    s_add_u32 s29, s29, s30
    v_and_b32 v2, 31, v1
    v_lshrrev_b32 v3, 5, v1
    v_bfe_u32 v40, v1, 1, 3
    v_xor_b32 v40, v40, v3
    s_lshl_b32 s30, s30, 12
    v_lshlrev_b32 v41, 7, v2
    v_add_u32 v41, s30, v41
    """)
    for ks in range(4):
        a(f"v_xor_b32 v42, {2*ks}, v40")
        a(f"v_lshl_add_u32 v{4+ks}, v42, 4, v41")
    a(f"""
    v_bfe_u32 v40, v1, 2, 2
    v_lshl_add_u32 v40, v3, 3, v40
    v_mul_u32_u24 v40, 40, v40
    s_mul_i32 s30, s31, 25600
    s_add_u32 s30, s30, {XN_W}
    v_add_u32 v40, s30, v40
    v_bfe_u32 v41, v1, 4, 1
    v_and_b32 v42, 3, v1
    v_lshl_add_u32 v41, v41, 2, v42
    v_or_b32 v41, 0x0c0c0c00, v41
    s_mov_b32 s30, {klo:#x}
    s_cmp_eq_u32 s31, 0
    s_cselect_b32 s30, s30, {vlo:#x}
    v_mov_b32 v45, s30
    v_mov_b32 v46, {khi:#x}
    v_perm_b32 v46, v46, v45, v41
    v_lshl_add_u32 v8, v46, 3, v40
    """)
    for i in range(16): a(f"v_mov_b32 v{112+i}, 0")
    def reads(buf, xoff, woff):
        B = 48 + 32 * buf
        for ks in range(4):
            a(f"ds_read_b128 {vr(B+8*ks,4)}, v{4+ks} offset:{xoff}")
            a(f"ds_read_b64_tr_b16 {vr(B+8*ks+4,2)}, v8 offset:{woff + ks*640}")
            a(f"ds_read_b64_tr_b16 {vr(B+8*ks+6,2)}, v8 offset:{woff + ks*640 + 160}")
    reads(0, 0, 0)
    a("s_mov_b32 s33, 0")
    a("s_cbranch_scc0 L_h_vloop")
    for kind in ("k", "v"):
        a.label(f"L_h_{kind}loop")
        for buf in range(2):
            a("s_waitcnt lgkmcnt(0)")
            reads(buf ^ 1, 8192 * (buf + 1), 2560 * (buf + 1))
            B = 48 + 32 * buf
            for ks in range(4):
                x, w = vr(B + 8 * ks, 4), vr(B + 8 * ks + 4, 4)
                a(f"v_mfma_f32_32x32x16_bf16 v[112:127], {w if kind == 'k' else x}, {x if kind == 'k' else w}, v[112:127]")
        for ks in range(4): a(f"v_add_u32 v{4+ks}, 16384, v{4+ks}")
        a(f"""
        v_add_u32 v8, 5120, v8
        s_add_u32 s33, s33, 1
        s_cmp_lt_u32 s33, 5
        s_cbranch_scc1 L_h_{kind}loop
        s_waitcnt lgkmcnt(0)
        s_mul_i32 s30, s29, {REC}
        s_add_u32 s30, s30, {WS_KV}
        s_nop 7
        """)
        for i in range(8): a(f"v_cvt_pk_bf16_f32 v{48+i}, v{112+2*i}, v{113+2*i}")
        if kind == "k":
            a(f"""
            buffer_store_dwordx4 v[48:51], v{L16}, s[8:11], s30 offen offset:{R_KA} sc1
            v_lshlrev_b32 v9, 3, v1
            s_mov_b32 exec_hi, 0
            buffer_store_dwordx2 v[52:53], v9, s[8:11], s30 offen offset:{R_KB} sc1
            s_mov_b32 exec_lo, 0
            s_mov_b32 exec_hi, -1
            s_nop 1
            v_mov_b32 v52, 0
            v_mov_b32 v53, 0
            s_mov_b64 exec, -1
            v_mov_b32 v60, 0
            """)
            for i in range(6): a(f"v_dot2c_f32_bf16 v60, v{48+i}, v{48+i}")
            a(f"""
            s_nop 2
            v_mov_b32 v61, v60
            s_nop 1
            v_permlane32_swap_b32 v61, v60
            s_nop 1
            v_add_f32 v60, v60, v61
            """)
            for sh in (1, 2, 4, 8):
                a("s_nop 1")
                a(f"v_max_f32_dpp v60, v60, v60 row_shr:{sh} row_mask:0xf bank_mask:0xf bound_ctrl:0")
            a(f"""
            s_nop 1
            v_readlane_b32 s32, v60, 15
            v_readlane_b32 s33, v60, 31
            s_nop 3
            s_max_u32 s32, s32, s33
            s_lshl_b32 s31, s29, 2
            s_add_u32 s31, s31, {WS_KMAX}
            v_mov_b32 v60, s32
            v_mov_b32 v44, 0
            s_mov_b64 exec, 1
            buffer_store_dword v60, v44, s[8:11], s31 offen sc1
            s_mov_b64 exec, -1
            s_branch L_h_kvpub
            """)
        else:
            a(f"""
            s_mov_b32 exec_lo, 0x100000
            s_mov_b32 exec_hi, 0x100000
            """)
            for i in range(8): a(f"v_mov_b32 v{48+i}, 0x3f803f80")
            a(f"""
            v_mov_b32 v2, 11
            s_mov_b32 exec_lo, 0x1ff000
            s_mov_b32 exec_hi, 0x1ff000
            v_add_u32 v2, 1, v2
            s_mov_b32 exec_lo, 0x1fffff
            s_mov_b32 exec_hi, 0x1fffff
            v_mul_u32_u24 v9, 21, v3
            v_add_lshl_u32 v9, v9, v2, 4
            s_add_u32 s31, s30, {2*REC}
            buffer_store_dwordx4 v[48:51], v9, s[8:11], s30 offen offset:{REC + R_VA} sc1
            buffer_store_dwordx4 v[52:55], v9, s[8:11], s31 offen sc1
            s_mov_b64 exec, -1
            """)
    a.label("L_h_kvpub")
    a("s_waitcnt vmcnt(0)")
    a(f"""
    v_mov_b32 v44, {CNT}
    v_mov_b32 v45, 1
    s_mov_b64 exec, 1
    ds_add_rtn_u32 v46, v44, v45 offset:{C_PUB2}
    s_waitcnt lgkmcnt(0)
    v_readfirstlane_b32 s27, v46
    s_mov_b64 exec, -1
    s_cmp_lg_u32 s27, 3
    s_cbranch_scc1 L_h_kvpub2
    """)
    a(f"s_lshl_b32 s30, s21, 2\ns_add_u32 s30, s30, {WS_MB + L_KV*MBS}")
    publish(a, "s30", 8, 44)
    a.label("L_h_kvpub2")
    st(a, 74)
    a("""
    s_barrier                               ; B2
    s_mov_b32 s67, 0
    s_branch L_a_start
    """)

Q1, Q2 = 4, 8
A_V, A_KA, A_KB = 10, 11, 12
G_V, G_KA, G_KB = 13, 14, 15
CM = 16
SB = [32, 48]
O = 64
P = 80
GB = [dict(vb=88, va=92, ka=96, kb=100), dict(vb=104, va=108, ka=112, kb=116)]
K0A, K0B = 120, 124
VCNT = 102
GD = {61: dict(ka=130, kb=134), 62: dict(vb=136, va=140, ka=144, kb=148), 63: dict(vb=150, va=154), 64: dict(vb=158)}
GDEPTH = 3
HS = 128
U = 8

def tile_body(a, t_par, reads, t=None):
    g = dict(GB[t_par]); gn = GB[t_par ^ 1]
    skip = set()
    if t is not None:
        g.update(GD.get(t, {}))
        skip = set(GD.get(t + 1, {}).keys())
        if t + 1 >= 63: skip |= {"ka", "kb", "va", "vb"}
    s = SB[t_par]; sn = SB[t_par ^ 1]
    last = t == 63
    def e(i): a(f"v_exp_f32 v{s+i}, v{s+i}")
    def c(i): a(f"v_cvt_pk_bf16_f32 v{P+i}, v{s+2*i}, v{s+2*i+1}")
    def rd(w):
        if w in skip: return
        if w == "ka": a(f"ds_read_b128 {vr(gn['ka'],4)}, v{A_KA} offset:{reads}")
        if w == "kb": a(f"ds_read_b64 {vr(gn['kb'],2)}, v{A_KB} offset:{reads}")
        if w == "vb": a(f"ds_read_b128 {vr(gn['vb'],4)}, v{A_V} offset:{reads}")
        if w == "va": a(f"ds_read_b128 {vr(gn['va'],4)}, v{A_V} offset:{reads+R_VA}")
    roll = ROLL and (t is None or t < 60)
    def w():
        if roll: a("s_waitcnt lgkmcnt(3)")
    if not roll: a("s_waitcnt lgkmcnt(0)")
    if t == 61:
        cnt_add(a, C_REL)
        lds_poll(a, VCNT, 124, C_CLRO, 4, "L_a_clro", sleep=1)
        a("s_waitcnt vmcnt(0)")
    w()
    if not last: a(f"v_mfma_f32_32x32x16_bf16 {vr(sn,16)}, {vr(g['ka'],4)}, {vr(Q1,4)}, {vr(CM,16)}")
    rd("ka"); e(0); e(1); e(2); c(0); e(3)
    w()
    a(f"v_mfma_f32_32x32x16_bf16 {vr(O,16)}, {vr(g['vb'],4)}, {vr(P+4,4)}, {vr(O,16)}")
    rd("vb"); e(4); c(1); e(5); e(6); c(2); e(7)
    w()
    if not last: a(f"v_mfma_f32_32x32x8_bf16 {vr(sn,16)}, {vr(g['kb'],2)}, {vr(Q2,2)}, {vr(sn,16)}")
    rd("kb"); e(8); c(3); e(9); e(10); c(4); e(11)
    w()
    a(f"v_mfma_f32_32x32x16_bf16 {vr(O,16)}, {vr(g['va'],4)}, {vr(P,4)}, {vr(O,16)}")
    rd("va"); e(12); c(5); e(13); e(14); e(15); c(6); c(7)

def lds_poll(a, va, vt, off, target, lbl, sleep=2):
    a.label(lbl)
    a(f"""
    ds_read_b32 v{vt}, v{va} offset:{off}
    s_waitcnt lgkmcnt(0)
    v_readfirstlane_b32 s27, v{vt}
    s_cmp_ge_u32 s27, {target}
    s_cbranch_scc1 {lbl}_ok
    s_sleep {sleep}
    s_branch {lbl}
    """)
    a.label(lbl + "_ok")

def gen_phase_a(a, pf):
    prof = pf.on
    lo, hi = pack_bytes(PV_BASE)
    a.label("L_a_start")
    if prof: a("s_memtime s[78:79]")
    a(f"""
    v_lshlrev_b32 v127, 4, v1               ; lane*16
    s_cmp_eq_u32 s7, 2
    s_cbranch_scc1 L_a_helper
    s_setprio 3
    v_and_b32 v2, 31, v1
    v_lshrrev_b32 v3, 5, v1
    v_lshlrev_b32 v126, 4, v2
    v_mov_b32 v{VCNT}, {CNT}
    v_mov_b32 v{VCNT+1}, 1
    """)
    a(f"""
    s_mul_i32 s30, s3, {QBLK}
    s_add_u32 s30, s30, {WS_Q}
    s_lshl_b32 s12, s66, 10
    s_add_u32 s12, s12, s30                 ; Q1 fragment of head w
    s_lshr_b32 s13, s66, 1
    s_and_b32 s13, s13, 1
    s_lshl_b32 s13, s13, 10
    s_lshl_b32 s14, s7, 9
    s_add_u32 s13, s13, s14
    s_and_b32 s14, s66, 1
    s_lshl_b32 s14, s14, 3
    s_add_u32 s13, s13, s14
    s_add_u32 s13, s13, s30
    s_add_u32 s13, s13, 8192                ; Q2 piece of head w
    v_add_u32 v{G_KA}, {R_KA}, v127
    v_lshlrev_b32 v{G_KB}, 3, v2
    v_add_u32 v{G_KB}, {R_KB}, v{G_KB}
    v_lshrrev_b32 v{G_V}, 2, v2
    v_or_b32 v{G_V}, 0x0c0c0c00, v{G_V}
    v_mov_b32 v16, {lo:#x}
    v_mov_b32 v17, {hi:#x}
    v_perm_b32 v{G_V}, v17, v16, v{G_V}
    v_and_b32 v16, 3, v1
    v_mul_u32_u24 v17, 21, v3
    v_add3_u32 v{G_V}, v{G_V}, v16, v17
    v_lshlrev_b32 v{G_V}, 4, v{G_V}
    v_add_u32 v{A_V}, {REC - LOFF}, v{G_V}
    v_add_u32 v{A_KA}, {REC - LOFF}, v{G_KA}
    v_add_u32 v{A_KB}, {REC - LOFF}, v{G_KB}
    v_lshlrev_b32 v16, 3, v2
    """)
    m = 0
    for i in (18, 19, 22, 23, 25, 26, 27, 29, 30, 31): m |= 1 << i
    a(f"""
    s_mov_b32 exec_lo, {m:#x}
    s_mov_b32 exec_hi, {m:#x}
    v_mov_b32 v{A_V}, 0x40000
    s_mov_b32 exec_lo, 0
    s_mov_b32 exec_hi, -1
    v_mov_b32 v{A_KB}, 0x40000
    s_mov_b64 exec, -1
    """)
    for i in range(16): a(f"v_mov_b32 v{O+i}, 0")
    for i in range(4):
        a(f"v_mov_b32 v{P+4+i}, 0")
        a(f"v_mov_b32 v{GB[0]['vb']+i}, 0")
    a("s_cmp_lg_u32 s66, 4\ns_cbranch_scc1 L_a_qw")
    a("""
    s_and_b32 s33, s3, 0xe0
    s_and_b32 s31, s3, 3
    s_lshl_b32 s31, s31, 1
    s_add_u32 s33, s33, s31
    s_bfe_u32 s31, s3, 0x10004
    s_add_u32 s33, s33, s31
    """)
    same_die(a, "s33", 122)
    ev_addr(a, EV_CLR, 30)
    a(f"""
    s_and_b32 s31, s3, 3
    s_lshl_b32 s31, s31, 7
    s_add_u32 s30, s30, s31
    s_add_u32 s30, s30, 128
    v_mov_b32 v123, s30
    s_cmp_eq_u32 s55, 0
    s_cselect_b32 s30, 2, 1
    v_mov_b32 v125, s30
    """)
    ev_poll(a, None, None, "L_a_qf", 122, sleep=1, tw=True)
    cnt_add(a, C_QOK, VCNT, 125)
    lds_poll(a, VCNT, 124, C_QOK, 1, "L_a_qw", sleep=1)
    st(a, 94)
    a("s_sub_u32 s55, 2, s27")
    two_way(a, "L_a_ql", [f"buffer_load_dwordx4 {vr(Q1,4)}, v127, s[8:11], s12 offen",
                          f"buffer_load_dwordx2 {vr(Q2,2)}, v126, s[8:11], s13 offen"], " nt")
    lds_poll(a, VCNT, 124, C_KVA, 4, "L_a_kva", sleep=1)
    st(a, 90)
    a(f"""
    ds_read_b32 v18, v{VCNT} offset:{C_KMAX}
    ds_read_b128 {vr(K0A,4)}, v127
    ds_read_b64 {vr(K0B,2)}, v16 offset:{R_KB - LOFF}
    ds_read_b128 {vr(GB[0]['ka'],4)}, v{A_KA}
    ds_read_b64 {vr(GB[0]['kb'],2)}, v{A_KB}
    ds_read_b128 {vr(GB[0]['va'],4)}, v{A_V} offset:{R_VA}
    s_waitcnt vmcnt(0)
    """)
    st(a, 96)
    a(f"""
    s_mov_b64 exec, 1
    ds_add_rtn_u32 v28, v{VCNT}, v{VCNT+1} offset:{C_QL2}
    s_waitcnt lgkmcnt(0)
    v_readfirstlane_b32 s27, v28
    s_mov_b64 exec, -1
    s_cmp_lg_u32 s27, 7
    s_cbranch_scc1 L_a_now
    s_cmp_ge_u32 s2, {4*46}
    s_cbranch_scc1 L_a_nw
    s_and_b32 s30, s2, 3
    s_mul_i32 s30, s30, {8*MBS}
    s_and_b32 s31, s2, 0xfc
    s_add_u32 s30, s30, s31
    s_add_u32 s30, s30, {WS_MB + L_W*MBS}
    """)
    publish(a, "s30", 8, 28)
    a.label("L_a_nw")
    def hpub(end, vt):
        a(f"""
        s_sub_u32 s30, s2, 64
        s_cmp_ge_u32 s30, 160
        s_cbranch_scc1 {end}
        s_lshr_b32 s31, s30, 5
        s_and_b32 s30, s2, 1
        s_mul_i32 s30, s30, 5
        s_add_u32 s31, s31, s30                 ; ng - 4
        s_and_b32 s30, s2, 6
        s_lshl_b32 s30, s30, 1
        s_bfe_u32 s32, s2, 0x20003
        s_add_u32 s30, s30, s32                 ; mt
        s_mul_i32 s30, s30, {MBS}
        s_lshl_b32 s31, s31, 2
        s_add_u32 s30, s30, s31
        s_add_u32 s30, s30, {WS_MB + L_H*MBS}
        """)
        publish(a, "s30", 1, vt)
    def hstores(end):
        a("s_cmp_eq_u32 s67, 0")
        a("s_cbranch_scc1 " + end)
        for u in range(5):
            if u == 3:
                a("s_cmp_eq_u32 s69, 13")
                a("s_cbranch_scc1 " + end)
            a(f"buffer_store_dwordx4 {vr(HS+8*u,4)}, v127, s[8:11], s65 offen sc1")
            a(f"buffer_store_dwordx4 {vr(HS+8*u+4,4)}, v127, s[8:11], s65 offen offset:1024 sc1")
            a("s_add_u32 s65, s65, 2048")
    def hcount(ret='L_a_loop'):
        a(f"""
        s_cmp_eq_u32 s67, 0
        s_cbranch_scc1 {ret}
        s_waitcnt vmcnt(0)
        s_mov_b64 exec, 1
        ds_add_rtn_u32 v124, v{VCNT}, v{VCNT+1} offset:{C_PUB}
        s_waitcnt lgkmcnt(0)
        v_readfirstlane_b32 s27, v124
        s_mov_b64 exec, -1
        s_cmp_lg_u32 s27, 3
        s_cbranch_scc1 {ret}
        """)
        hpub(ret, 122)
    if HMODE == 0: hpub("L_a_now", 28)
    a.label("L_a_now")
    if HMODE == 1:
        hstores("L_a_now2")
        a.label("L_a_now2")
    a(f"""
    s_mov_b32 exec_lo, 0
    v_mov_b32 v{Q2}, 0
    v_mov_b32 v{Q2+1}, 0
    s_mov_b64 exec, -1
    v_mov_b32 v2, 0
    v_dot2c_f32_bf16 v2, v{Q1}, v{Q1}
    v_dot2c_f32_bf16 v2, v{Q1+1}, v{Q1+1}
    v_dot2c_f32_bf16 v2, v{Q1+2}, v{Q1+2}
    v_dot2c_f32_bf16 v2, v{Q1+3}, v{Q1+3}
    v_dot2c_f32_bf16 v2, v{Q2}, v{Q2}
    v_dot2c_f32_bf16 v2, v{Q2+1}, v{Q2+1}
    s_nop 2
    v_mov_b32 v3, v2
    s_nop 1
    v_permlane32_swap_b32 v3, v2
    s_waitcnt lgkmcnt(0)
    s_nop 0
    v_add_f32 v2, v2, v3
    v_mul_f32 v2, v18, v2
    v_sqrt_f32 v2, v2
    s_nop 0
    v_sub_f32 v{CM}, 0, v2
    """)
    for i in range(1, 16):
        a(f"v_mov_b32 v{CM+i}, v{CM}")
    if prof: a("s_memtime s[80:81]")
    if os.environ.get('HOLD'):
        a.label("L_hold")
        a(f"""
        s_memrealtime s[30:31]
        s_waitcnt lgkmcnt(0)
        s_sub_u32 s30, s30, s64
        s_cmp_lt_i32 s30, {int(os.environ['HOLD'])}
        s_cbranch_scc1 L_hold
        """)
    a(f"""
    s_nop 1
    v_mfma_f32_32x32x16_bf16 {vr(SB[0],16)}, {vr(K0A,4)}, {vr(Q1,4)}, {vr(CM,16)}
    v_mfma_f32_32x32x8_bf16 {vr(SB[0],16)}, {vr(K0B,2)}, {vr(Q2,2)}, {vr(SB[0],16)}
    s_mov_b32 s24, 0
    s_setprio 2
    s_nop 9
    """)
    a.lines.append(".p2align 6")
    a.label("L_a_loop")
    for u in range(U):
        tile_body(a, u & 1, (u + 1) * REC)
        if u == 3 and MID:
            a(f"s_cmp_eq_u32 s24, s67\ns_cbranch_scc1 L_a_mid")
            a.label("L_a_mret")
    a(f"""
    v_add_u32 v{A_V}, {U*REC}, v{A_V}
    v_add_u32 v{A_KA}, {U*REC}, v{A_KA}
    v_add_u32 v{A_KB}, {U*REC}, v{A_KB}
    s_add_u32 s24, s24, 1
    """ + ("""
    s_memtime s[84:85]
    s_waitcnt lgkmcnt(0)
    s_mov_b32 m0, s24
    s_nop 0
    v_writelane_b32 v119, s84, m0
    """ if prof else "") + f"""
    s_cmp_eq_u32 s24, 1
    s_cbranch_scc1 L_a_e1
    s_cmp_eq_u32 s24, 2
    s_cbranch_scc1 {'L_a_e2' if HMODE == 2 else 'L_a_loop'}
    s_cmp_eq_u32 s24, 3
    s_cbranch_scc1 L_a_loop
    s_cmp_eq_u32 s24, 4
    s_cbranch_scc1 L_a_e4
    s_cmp_eq_u32 s24, 5
    s_cbranch_scc1 L_a_e5
    s_cmp_eq_u32 s24, 6
    s_cbranch_scc1 L_a_e6
    s_cmp_ge_u32 s66, {LASTP}
    s_cbranch_scc1 L_a_lp
    s_setprio 0
    """)
    a.label("L_a_lp")
    for t in range(56, 64):
        tile_body(a, t & 1, (t - 56 + 1) * REC, t)
    a(f"""
    s_nop 1
    v_mfma_f32_32x32x16_bf16 {vr(O,16)}, {vr(GD[64]['vb'],4)}, {vr(P+4,4)}, {vr(O,16)}
    s_mov_b32 s26, 0x12800000               ; 2^-90
    s_lshr_b32 s12, s3, 2
    s_mul_i32 s12, s12, {NKS}
    s_and_b32 s13, s3, 3
    s_lshl_b32 s13, s13, 3
    s_add_u32 s13, s13, s66                 ; head
    s_add_u32 s14, s12, s13
    s_lshl_b32 s14, s14, 10
    s_add_u32 s14, s14, {WS_AH}
    s_lshr_b32 s15, s13, 2
    s_add_u32 s15, s15, s12
    s_lshl_b32 s15, s15, 10
    s_and_b32 s13, s13, 3
    s_lshl_b32 s13, s13, 2
    s_add_u32 s15, s15, s13
    s_add_u32 s15, s15, {WS_AH + 32*1024}
    v_cmp_ne_u32 s[32:33], s64, v162
    v_cmp_ne_u32 s[34:35], s54, v163
    v_mov_b32 v164, s64
    s_lshr_b32 s29, s3, 2
    s_mul_i32 s29, s29, {MBS}
    s_and_b32 s31, s3, 3
    s_lshl_b32 s31, s31, 7
    s_add_u32 s29, s29, s31
    s_lshl_b32 s31, s66, 2
    s_add_u32 s29, s29, s31
    s_add_u32 s29, s29, {WS_MB + L_CLR*MBS + 640}
    s_or_b32 s55, s32, s34
    v_cmp_nle_f32 vcc, s26, v{O+SUMREG}
    s_cbranch_vccnz L_a_fallback
    """)
    a.label("L_a_fin")
    if os.environ.get('HOLD3'):
        a.label("L_hold3")
        a(f"""
        s_memrealtime s[32:33]
        s_waitcnt lgkmcnt(0)
        s_sub_u32 s32, s32, s64
        s_cmp_lt_i32 s32, {int(os.environ['HOLD3'])}
        s_cbranch_scc1 L_hold3
        """)
    st(a, 98)
    a(f"v_rcp_f32 v2, v{O+SUMREG}")
    a("s_nop 0")
    for i in range(10): a(f"v_mul_f32 v{O+i}, v{O+i}, v2")
    for i in range(5): a(f"v_cvt_pk_bf16_f32 v{P+i}, v{O+2*i}, v{O+2*i+1}")
    two_way(a, "L_a_os", [f"buffer_store_dwordx4 {vr(P,4)}, v127, s[8:11], s14 offen",
                          f"buffer_store_dword v{P+4}, v127, s[8:11], s15 offen"])
    a("s_mov_b64 exec, 1")
    if NOHINT: a(f"ds_add_u32 v{VCNT}, v{VCNT+1} offset:{C_O1}")
    two_way(a, "L_a_oh2", ["buffer_store_dword v164, off, s[8:11], s29"])
    a("s_mov_b64 exec, -1")
    if prof:
        pf.n = 6
        pf.dump(wave="s66", vtmp=88)
        a("""
        s_mov_b32 s74, s90
        s_mov_b32 s76, s92
        s_mov_b32 s78, s94
        s_mov_b32 s80, s96
        s_mov_b32 s100, s98
        """)
        pf.slot = 2
        pf.dump(wave="s66", vtmp=88, last="s100")
        pf.slot = 0
        a("""
        v_writelane_b32 v119, s72, 0
        v_writelane_b32 v119, s98, 8
        s_lshl_b32 s86, s2, 4
        s_add_u32 s86, s86, s66
        s_lshl_b32 s86, s86, 6
        s_add_u32 s86, s86, 0xC0000
        s_load_dwordx2 s[84:85], s[0:1], 40
        v_lshl_add_u32 v118, v1, 2, s86
        s_mov_b64 exec, 0xffff
        s_waitcnt lgkmcnt(0)
        global_store_dword v118, v119, s[84:85]
        """)
    a.label("L_end")
    a("s_endpgm")
    a.label("L_a_e1")
    assert HMODE == 2
    hstores("L_a_loop")
    a("s_branch L_a_loop")
    a.label("L_a_e2")
    lds_poll(a, VCNT, 124, C_KVB, 4, "L_a_kvb", sleep=1)
    if not MID: hcount()
    a("s_branch L_a_loop")
    if MID:
        a.label("L_a_mid")
        hcount("L_a_mret")
        a("s_branch L_a_mret")
    a.label("L_a_e4")
    cnt_add(a, C_P32)
    lds_poll(a, VCNT, 124, C_KVC, 4, "L_a_kvc", sleep=1)
    a("s_branch L_a_loop")
    a.label("L_a_e5")
    a(f"""
    s_setprio 1
    s_mov_b32 s20, {WS_KV + 62*REC}
    s_mov_b32 s21, {WS_KV + 63*REC}
    s_mov_b32 s22, {WS_KV + 64*REC}
    s_mov_b32 s23, {WS_KV + 65*REC}
    buffer_load_dwordx4 {vr(GD[61]['ka'],4)}, v{G_KA}, s[8:11], s20 offen sc1
    buffer_load_dwordx2 {vr(GD[61]['kb'],2)}, v{G_KB}, s[8:11], s20 offen sc1
    buffer_load_dwordx4 {vr(GD[62]['vb'],4)}, v{G_V}, s[8:11], s21 offen sc1
    buffer_load_dwordx4 {vr(GD[62]['va'],4)}, v{G_V}, s[8:11], s21 offen offset:{R_VA} sc1
    buffer_load_dwordx4 {vr(GD[62]['ka'],4)}, v{G_KA}, s[8:11], s21 offen sc1
    buffer_load_dwordx2 {vr(GD[62]['kb'],2)}, v{G_KB}, s[8:11], s21 offen sc1
    buffer_load_dwordx4 {vr(GD[63]['vb'],4)}, v{G_V}, s[8:11], s22 offen sc1
    buffer_load_dwordx4 {vr(GD[63]['va'],4)}, v{G_V}, s[8:11], s22 offen offset:{R_VA} sc1
    buffer_load_dwordx4 {vr(GD[64]['vb'],4)}, v{G_V}, s[8:11], s23 offen sc1
    v_and_b32 v164, 3, v1
    v_lshlrev_b32 v164, 3, v164
    """)
    ev_addr(a, EV_CLR, 30)
    a("""
    buffer_load_dwordx2 v[162:163], v164, s[8:11], s30 offen offset:64 sc1
    s_branch L_a_loop
    """)
    a.label("L_a_e6")
    cnt_add(a, C_P48)
    a("s_branch L_a_loop")
    gen_a_helper(a, pf)
    gen_fallback(a)

def gen_a_helper(a, pf):
    prof = pf.on
    a.label("L_a_helper")
    if DIAG: a("s_memtime s[74:75]\ns_memrealtime s[84:85]")
    a(f"""
    v_mov_b32 v2, v127
    v_mov_b32 v4, 0
    v_mov_b32 v10, v1
    s_setprio 2
    """)
    get_tag(a, "L_a_tag", 4, 8)
    a(f"v_mov_b32 v0, {CNT}\nv_mov_b32 v5, 1")
    a("s_cmp_lg_u32 s6, 0\ns_cbranch_scc1 L_a_kvf")
    ev_poll(a, EV_KV, 32, "L_a_kvp", 8, sleep=3)
    cnt_add(a, C_KVF, 0, 5)
    lds_poll(a, 0, 3, C_KVF, 1, "L_a_kvf", sleep=1)
    a(f"""
    s_lshl_b32 s22, s6, 10
    s_add_u32 s23, s22, {WS_KV + LOFF}
    """)
    kv_first(a)
    if not KVQ:
        a("s_cmp_ge_u32 s2, 64\ns_cbranch_scc1 L_a_qst_ok")
        lds_poll(a, 0, 3, C_QLD, 4, "L_a_qst", sleep=2)
        for i in range(10, 18): kv_round(a)
    st(a, 94)
    for i in range(4): a(f"v_mov_b32 v{40+i}, -1")
    a(f"""
    s_lshr_b32 s20, s3, 2                   ; tt
    s_and_b32 s21, s3, 3                    ; cg
    v_and_b32 v6, 31, v1
    v_mul_u32_u24 v6, 1280, v6
    v_lshrrev_b32 v7, 5, v1
    v_lshl_add_u32 v1, v7, 5, v6
    s_mul_i32 s38, s20, {32*1280}
    s_mul_i32 s27, s21, 320
    s_add_u32 s38, s38, s27
    """)
    lds_poll(a, 0, 3, C_RING, "s39", "L_a_ring", sleep=2)
    if KVQ:
        a("s_setprio 3")
        lds_poll(a, 0, 3, C_QL2, 8, "L_a_ql0", sleep=1)
        a("s_setprio 0")
        for i in range(12, 18):
            kv_round(a)
            if THR: a(f"s_waitcnt vmcnt({THR})")
    for i in range(18, 40):
        if i == 39:
            a("s_cmp_eq_u32 s6, 3")
            a("s_cselect_b32 exec_hi, 3, -1")
        kv_round(a)
        if THR: a(f"s_waitcnt vmcnt({THR})")
        if i == (27 if not THR else 21 + int(THR)):
            a("s_waitcnt vmcnt(6)")
            cnt_add(a, C_KVB, 0, 5)
    a("s_mov_b64 exec, -1")
    a("s_waitcnt vmcnt(0)")
    cnt_add(a, C_KVC, 0, 5)
    st(a, 96)
    a("s_setprio 3")
    if DIAG: a("s_memtime s[76:77]\ns_memrealtime s[86:87]")
    clear_o(a)
    st(a, 98)
    a("s_cmp_lg_u32 s6, 0\ns_cbranch_scc1 L_a_ff")
    ev_poll(a, EV_W, 46, "L_a_wp", 8, sleep=12, vlane="v10")
    ev_poll(a, EV_H, 10, "L_a_hp", 8, sleep=4, vlane="v10")
    cnt_add(a, C_FF, 0, 5)
    lds_poll(a, 0, 3, C_FF, 1, "L_a_ff", sleep=3)
    if prof: a("s_memtime s[74:75]")
    a(f"""
    s_setprio {GPRIO}
    s_mul_i32 s22, s6, 24
    s_add_u32 s22, s22, 40
    s_mul_i32 s33, s20, {NKS}
    s_add_u32 s23, s33, s22
    s_lshl_b32 s23, s23, 10
    s_add_u32 s23, s23, {WS_AH}             ; H' offset
    s_mul_i32 s34, s21, {NKS}
    s_add_u32 s24, s34, s22
    s_mul_i32 s24, s24, 5120
    s_add_u32 s24, s24, {WS_W}              ; W' offset
    """)
    def gload(i):
        b = GFB + 24 * (i % GDEPTH)
        a(f"buffer_load_dwordx4 {vr(b,4)}, v2, s[8:11], s23 offen sc1")
        for ct in range(4):
            a(f"buffer_load_dwordx4 {vr(b+4+4*ct,4)}, v2, s[8:11], s24 offen offset:{ct*1024} sc1")
        a("s_add_u32 s25, s24, 4096")
        a(f"buffer_load_dwordx4 {vr(b+20,4)}, v2, s[8:11], s25 offen sc1")
        a("s_add_u32 s23, s23, 1024")
        a("s_add_u32 s24, s24, 5120")
    def gmfma(i, first=False):
        b = GFB + 24 * (i % GDEPTH)
        for ct in range(5):
            a(f"v_mfma_f32_32x32x16_bf16 {vr(GACC+16*ct,16)}, {vr(b+4+4*ct,4)}, {vr(b,4)}, {'0' if first else vr(GACC+16*ct,16)}")
            if GSP: a(GSP)
    for i in range(GDEPTH): gload(i)
    a(f"s_mov_b32 s26, {24 // GDEPTH - 1}")
    a(f"s_waitcnt vmcnt({6*(GDEPTH-1)})")
    gmfma(0, True)
    a("s_branch L_a_gin")
    a.label("L_a_gloop")
    for i in range(GDEPTH):
        a(f"s_waitcnt vmcnt({6*(GDEPTH-1)})")
        gmfma(i)
        if i == 0: a.label("L_a_gin")
        gload(i)
    a("""
    s_sub_u32 s26, s26, 1
    s_cmp_lg_u32 s26, 0
    s_cbranch_scc1 L_a_gloop
    """)
    for i in range(GDEPTH):
        a(f"s_waitcnt vmcnt({6*(GDEPTH-1-i)})")
        gmfma(i)
    if prof: a("s_memtime s[76:77]")
    a(f"s_setprio {TPRIO}")
    a(f"""
    s_mov_b64 exec, 1
    ds_add_rtn_u32 v3, v0, v5 offset:{C_CLRO}
    s_waitcnt lgkmcnt(0)
    v_readfirstlane_b32 s27, v3
    s_mov_b64 exec, -1
    s_cmp_lg_u32 s27, 3
    s_cbranch_scc1 L_a_noclr
    """)
    publish_clr_o(a, "v10", 8)
    a.label("L_a_noclr")
    gen_tail(a, prof)
    if DIAG:
        a("""
        s_waitcnt vmcnt(0)
        s_memtime s[80:81]
        s_memrealtime s[82:83]
        s_waitcnt lgkmcnt(0)
        s_cmp_lg_u32 s6, 0
        s_cbranch_scc1 L_diag_end
        s_cmp_eq_u32 s2, 72
        s_cbranch_scc0 L_diag2
        s_sub_u32 s74, s74, s72
        s_sub_u32 s76, s76, s72
        s_sub_u32 s78, s78, s72
        s_sub_u32 s80, s80, s72
        s_sub_u32 s84, s84, s70
        s_sub_u32 s86, s86, s70
        s_sub_u32 s88, s88, s70
        s_sub_u32 s90, s82, s70
        v_mov_b32 v20, s74
        v_mov_b32 v21, s76
        v_mov_b32 v22, s78
        v_mov_b32 v23, s80
        v_mov_b32 v24, s84
        v_mov_b32 v25, s86
        v_mov_b32 v26, s88
        v_mov_b32 v27, s90
        buffer_store_dwordx4 v[20:23], off, s[16:19], 0 offset:16
        buffer_store_dwordx4 v[24:27], off, s[16:19], 0 offset:32
        """)
        a.label("L_diag2")
        a("""
        s_sub_u32 s82, s82, s64
        s_sub_u32 s70, s64, s70
        s_add_u32 s70, s70, 1000
        v_mov_b32 v20, s82
        v_mov_b32 v21, s70
        s_and_b32 s30, s2, 7
        s_sub_u32 s30, s30, s54
        s_and_b32 s30, s30, 7
        s_lshl_b32 s30, 1, s30
        v_mov_b32 v22, s30
        s_mov_b64 exec, 1
        buffer_atomic_umax v20, off, s[16:19], 0 offset:4 sc1
        buffer_atomic_umax v21, off, s[16:19], 0 offset:8 sc1
        buffer_atomic_or v22, off, s[16:19], 0 offset:12 sc1
        """)
        a.label("L_diag_end")
    if prof:
        st(a, 98)
        a("s_waitcnt vmcnt(0)")
        pf.n = 6
        pf.dump(wave="s66", vtmp=140)
        a("""
        s_mov_b32 s74, s90
        s_mov_b32 s76, s92
        s_mov_b32 s78, s94
        s_mov_b32 s80, s96
        s_mov_b32 s100, s98
        s_add_u32 s66, s66, 4
        """)
        pf.dump(wave="s66", vtmp=140, last="s100")
    a("s_endpgm")

def gen_tail(a, prof):
    AA, AB = 16, 80
    WR = [32 + 4 * i for i in range(12)] + [96 + 4 * i for i in range(8)]
    ST = [128 + 4 * i for i in range(10)]
    KB = 1024
    OBASE = 116 * KB
    srd(a, 12, 44, S * D * 2)
    srd(a, 56, 60, S * D * 2)
    a(f"""
    s_lshl_b32 s39, s6, 6
    s_add_u32 s39, s39, s38                 ; tile g
    s_lshl_b32 s27, s6, 3
    s_add_u32 s38, s38, s27
    s_add_u32 s38, s38, 256
    buffer_load_dwordx4 {vr(ST[0],4)}, v1, s[12:15], s39 offen
    buffer_load_dwordx4 {vr(ST[1],4)}, v1, s[12:15], s39 offen offset:16
    buffer_load_dwordx2 v[12:13], v1, s[12:15], s38 offen
    s_mul_i32 s35, s34, 5120
    s_lshl_b32 s37, s6, 10
    s_add_u32 s35, s35, s37
    s_add_u32 s35, s35, {WS_W}
    s_sub_u32 s36, 4096, s37
    v_add_u32 v4, s37, v2
    s_lshl_b32 s27, s6, 12
    v_add_u32 v6, s27, v2
    s_lshl_b32 s27, s6, 14
    v_add_u32 v7, s27, v2
    """)
    for i in range(4):
        a(f"""
        s_add_u32 s27, s6, {i}
        s_and_b32 s27, s27, 3
        s_mul_i32 s{40+i}, s27, {8*5120}
        s_add_u32 s{40+i}, s{40+i}, s35
        s_mul_i32 s{46+i}, s27, {2*5120}
        s_add_u32 s{46+i}, s{46+i}, s35
        s_add_u32 s{46+i}, s{46+i}, {32*5120}
        s_mul_i32 s27, s27, 10240
        s_add_u32 s27, s27, {OBASE}
        v_add_u32 v{[11,14,15,8][i]}, s27, v2
        """)
    a(f"""
    s_lshl_b32 s27, s6, 3
    s_add_u32 s50, s33, s27
    s_lshl_b32 s50, s50, 10
    s_add_u32 s50, s50, {WS_AH}             ; O' head steps of block (tt, g)
    s_add_u32 s23, s50, 4096
    s_lshl_b32 s27, s6, 1
    s_add_u32 s51, s33, s27
    s_lshl_b32 s51, s51, 10
    s_add_u32 s51, s51, {WS_AH + 32*1024}
    """)
    def woff(n):
        p, i, t4 = (0, n % 10, n < 10) if n < 20 else (1 + (n - 20) // 10, (n - 20) % 10, False)
        if i < 8: a(f"s_add_u32 s25, s{40+p}, {i*5120}")
        else: a(f"s_add_u32 s25, s{46+p}, {(i-8)*5120}")
        if t4: a("s_add_u32 s25, s25, s36")
    def wdma(f):
        woff(20 + f)
        a(f"s_add_u32 m0, s37, {f*4*KB}")
        a("s_nop 0")
        a("buffer_load_dwordx4 v2, s[8:11], s25 offen sc1 lds")
    def wload(n, dst):
        woff(n)
        a(f"buffer_load_dwordx4 {vr(dst,4)}, v2, s[8:11], s25 offen sc1")
    a('s_setprio 0')
    for n in range(12, 20): wload(n, WR[n])
    a('s_setprio 3')
    lds_poll(a, 0, 3, C_P32, 8, "L_t_p32", sleep=16)
    a('s_setprio 0')
    for f in range(16, 20): wdma(f)
    for ct in range(4):
        for rg in range(4):
            a(f"ds_write_b128 v6, {vr(GACC+16*ct+4*rg,4)} offset:{ct*16384 + rg*1024}")
    a("s_waitcnt lgkmcnt(0)")
    cnt_add(a, C_RED, 0, 5)
    a("s_setprio 3")
    a("v_mov_b32 v6, v8")
    lds_poll(a, 0, 3, C_RED, 4, "L_t_red", sleep=4)
    for g in range(4):
        for rg in range(4):
            a(f"ds_read_b128 {vr(16+16*g+4*rg,4)}, v7 offset:{g*4096 + rg*1024}")
        if g == 2: a("s_waitcnt lgkmcnt(4)")
    a("s_waitcnt lgkmcnt(0)")
    cnt_add(a, C_RED2, 0, 5)
    lds_poll(a, 0, 3, C_RED2, 4, "L_t_red2", sleep=2)
    a('s_setprio 0')
    for f in range(16): wdma(f)
    a('s_setprio 3')
    for k in (32, 48, 64):
        for i in range(16): a(f"v_add_f32 v{16+i}, v{16+i}, v{k+i}")
    a("s_waitcnt vmcnt(28)")
    for i in range(8):
        a(f"v_lshlrev_b32 v{32+2*i}, 16, v{ST[0]+i}")
        a(f"v_and_b32 v{33+2*i}, 0xffff0000, v{ST[0]+i}")
    for i in range(16): a(f"v_add_f32 v{16+i}, v{16+i}, v{32+i}")
    a('s_setprio 0')
    for n in range(12): wload(n, WR[n])
    a('s_setprio 3')
    ev_poll(a, EV_CLR, 4, "L_a_cp", 8, sleep=8, vlane="v10")
    a("s_and_b32 s29, s3, 0xfc\ns_add_u32 s29, s29, s6")
    same_die(a, "s29", 8)
    lds_poll(a, 0, 3, C_P48, 8, "L_t_p48", sleep=16)
    a('s_setprio 0')
    for f in range(20, 29): wdma(f)
    a('s_setprio 3')
    ev_addr(a, EV_CLR, 30)
    a("""
    s_lshl_b32 s31, s6, 7
    s_add_u32 s30, s30, s31
    s_add_u32 s30, s30, 640
    v_and_b32 v9, 7, v10
    v_lshl_add_u32 v9, v9, 2, s30
    v_add_u32 v7, 0x10000, v4
    s_lshl_b32 s27, s6, 12
    v_add_u32 v10, s27, v2
    """)
    OB = [11, 14, 15, 6]
    a("s_setprio 3")
    lds_poll(a, 0, 3, C_REL, 8, "L_t_rel", sleep=6)
    if DIAG: a("s_memtime s[78:79]\ns_memrealtime s[88:89]")
    st(a, 90)
    if NOHINT:
        a("s_cmp_lg_u32 s55, 0\ns_cbranch_scc1 L_t_hint")
        lds_poll(a, 0, 3, C_O1, 8, "L_t_fin", sleep=1)
        a("s_branch L_t_oh_ok")
        a.label("L_t_hint")
    ev_poll(a, None, None, "L_t_oh", 8, sleep=0, tw=True)
    st(a, 92)
    a("s_mov_b32 s28, 0")
    a.label("L_t_op")
    two_way(a, "L_t_ol", [f"buffer_load_dwordx4 {vr(ST[i],4)}, v2, s[8:11], {'s50' if i < 4 else 's23'} offen offset:{(i%4)*1024}" for i in range(8)]
            + [f"buffer_load_dwordx4 {vr(ST[8+i],4)}, v2, s[8:11], s51 offen offset:{i*1024}" for i in range(2)], " nt")
    for i in range(10):
        a(f"s_waitcnt vmcnt({9-i})")
        a(f"ds_write_b128 v{OB[0]}, {vr(ST[i],4)} offset:{i*1024}")
        r = ST[i]
        a(f"v_max3_u32 v3, v{r}, v{r+1}, v{r+2}" if i == 0 else f"v_max3_u32 v3, v3, v{r}, v{r+1}")
        a(f"v_max_u32 v3, v3, v{r+3}" if i == 0 else f"v_max3_u32 v3, v3, v{r+2}, v{r+3}")
    a(f"""
    v_cmp_eq_u32 vcc, -1, v3
    s_waitcnt lgkmcnt(0)
    s_cbranch_vccz L_t_ok
    s_add_u32 s28, s28, 1
    s_cmp_lt_u32 s28, {SPIN}
    s_cbranch_scc1 L_t_op
    """)
    a.label("L_t_ok")
    if prof: a("s_memtime s[80:81]\ns_waitcnt lgkmcnt(0)")
    cnt_add(a, C_O0, 0, 5)
    def wread(f, dst):
        o = f * 4 * KB
        return f"ds_read_b128 {vr(dst,4)}, v{4 if o < 0x10000 else 7} offset:{o & 0xffff}"
    def oread(m, dst): return f"ds_read_b128 {vr(dst,4)}, v{OB[1 + m // 10]} offset:{(m % 10) * 1024}"
    WBUF = lambda m: WR[1 + m % 16]
    for n in range(20):
        acc = AB if n < 10 else AA
        a(f"v_mfma_f32_32x32x16_bf16 {vr(acc,16)}, {vr(WR[n],4)}, {vr(ST[n % 10],4)}, {vr(acc,16)}")
        if n == 0: wload(49, WR[0])
        if 1 <= n <= 14: a(wread(n - 1, WBUF(n - 1)))
        if n == 16:
            a("s_waitcnt lgkmcnt(0)")
            for rg in range(4): a(f"ds_write_b128 v4, {vr(AB+4*rg,4)} offset:{rg*4*KB}")
    a("s_waitcnt lgkmcnt(0)")
    cnt_add(a, C_B, 0, 5)
    lds_poll(a, 0, 3, C_O0, 4, "L_t_o", sleep=0)
    q = []
    def issue(x, key): a(x); q.append(key)
    for m in range(8): issue(oread(m, ST[m]), ("o", m))
    for f in (14, 15): issue(wread(f, WBUF(f)), ("w", f))
    for m in range(30):
        need = [k for k in (("o", m), ("w", m)) if k in q]
        if need:
            last = max(q.index(k) for k in need)
            a(f"s_waitcnt lgkmcnt({len(q) - last - 1})")
            del q[:last + 1]
        if m == 29: a("s_waitcnt vmcnt(0)")
        w = WBUF(m) if m < 29 else WR[0]
        a(f"v_mfma_f32_32x32x16_bf16 {vr(AA,16)}, {vr(w,4)}, {vr(ST[m % 10],4)}, {vr(AA,16)}")
        if m + 8 < 30: issue(oread(m + 8, ST[(m + 8) % 10]), ("o", m + 8))
        if m >= 10 and m + 6 < 29: issue(wread(m + 6, WBUF(m + 6)), ("w", m + 6))
        assert len(q) <= 15
    st(a, 94)
    lds_poll(a, 0, 3, C_B, 4, "L_t_b", sleep=0)
    for g in range(4): a(f"ds_read_b128 {vr(96+4*g,4)}, v10 offset:{g*KB}")
    a("""
    v_lshlrev_b32 v112, 16, v12
    v_and_b32 v113, 0xffff0000, v12
    v_lshlrev_b32 v114, 16, v13
    v_and_b32 v115, 0xffff0000, v13
    """)
    for i in range(8): a(f"v_cvt_pk_bf16_f32 v{120+i}, v{AA+2*i}, v{AA+2*i+1}")
    if os.environ.get('HOLD2'):
        a.label("L_hold2")
        a(f"""
        s_memrealtime s[32:33]
        s_waitcnt lgkmcnt(0)
        s_sub_u32 s32, s32, s64
        s_cmp_lt_i32 s32, {int(os.environ['HOLD2'])}
        s_cbranch_scc1 L_hold2
        """)
    a("""
    buffer_store_dwordx4 v[120:123], v1, s[56:59], s39 offen
    buffer_store_dwordx4 v[124:127], v1, s[56:59], s39 offen offset:16
    s_waitcnt lgkmcnt(0)
    """)
    for g in range(4):
        for i in range(4): a(f"v_add_f32 v{112+i}, v{112+i}, v{96+4*g+i}")
    a("""
    v_cvt_pk_bf16_f32 v116, v112, v113
    v_cvt_pk_bf16_f32 v117, v114, v115
    buffer_store_dwordx2 v[116:117], v1, s[56:59], s38 offen
    """)
    st(a, 96)

def gen_fallback(a):
    a.label("L_a_fallback")
    a(f"""
    s_mov_b32 s20, {WS_KV}
    s_mov_b32 s24, 0
    v_mov_b32 v2, 0xff800000
    """)
    a.label("L_a_fb1")
    a(f"""
    buffer_load_dwordx4 {vr(K0A,4)}, v{G_KA}, s[8:11], s20 offen sc1
    buffer_load_dwordx2 {vr(K0B,2)}, v{G_KB}, s[8:11], s20 offen sc1
    s_waitcnt vmcnt(0)
    v_mfma_f32_32x32x16_bf16 {vr(SB[0],16)}, {vr(K0A,4)}, {vr(Q1,4)}, 0
    v_mfma_f32_32x32x8_bf16 {vr(SB[0],16)}, {vr(K0B,2)}, {vr(Q2,2)}, {vr(SB[0],16)}
    s_nop 15
    """)
    for i in range(0, 16, 2):
        a(f"v_max3_f32 v2, v{SB[0]+i}, v{SB[0]+i+1}, v2")
    a(f"""
    s_add_u32 s20, s20, {REC}
    s_add_u32 s24, s24, 1
    s_cmp_lt_u32 s24, 64
    s_cbranch_scc1 L_a_fb1
    v_mov_b32 v3, v2
    s_nop 1
    v_permlane32_swap_b32 v3, v2
    s_nop 1
    v_max_f32 v2, v2, v3
    v_sub_f32 v{CM}, 0, v2
    """)
    for i in range(1, 16): a(f"v_mov_b32 v{CM+i}, v{CM}")
    for i in range(16): a(f"v_mov_b32 v{O+i}, 0")
    g = GB[0]; s = SB[0]
    a(f"""
    s_mov_b32 s20, {WS_KV}
    s_mov_b32 s24, 0
    """)
    a.label("L_a_fb2")
    a(f"""
    s_add_u32 s21, s20, {REC}
    s_add_u32 s22, s20, {2*REC}
    buffer_load_dwordx4 {vr(K0A,4)}, v{G_KA}, s[8:11], s20 offen sc1
    buffer_load_dwordx2 {vr(K0B,2)}, v{G_KB}, s[8:11], s20 offen sc1
    buffer_load_dwordx4 {vr(g['va'],4)}, v{G_V}, s[8:11], s21 offen offset:{R_VA} sc1
    buffer_load_dwordx4 {vr(g['vb'],4)}, v{G_V}, s[8:11], s22 offen sc1
    s_waitcnt vmcnt(0)
    v_mfma_f32_32x32x16_bf16 {vr(s,16)}, {vr(K0A,4)}, {vr(Q1,4)}, {vr(CM,16)}
    v_mfma_f32_32x32x8_bf16 {vr(s,16)}, {vr(K0B,2)}, {vr(Q2,2)}, {vr(s,16)}
    s_nop 15
    """)
    for i in range(16): a(f"v_exp_f32 v{s+i}, v{s+i}")
    a("s_nop 0")
    for i in range(8): a(f"v_cvt_pk_bf16_f32 v{P+i}, v{s+2*i}, v{s+2*i+1}")
    a(f"""
    s_nop 1
    v_mfma_f32_32x32x16_bf16 {vr(O,16)}, {vr(g['va'],4)}, {vr(P,4)}, {vr(O,16)}
    v_mfma_f32_32x32x16_bf16 {vr(O,16)}, {vr(g['vb'],4)}, {vr(P+4,4)}, {vr(O,16)}
    s_add_u32 s20, s20, {REC}
    s_add_u32 s24, s24, 1
    s_cmp_lt_u32 s24, 64
    s_nop 15
    s_cbranch_scc1 L_a_fb2
    s_branch L_a_fin
    """)

def gen_mega(a, name, prof=False):
    kernel_head(a, name)
    a.label("L_code_begin")
    if DIAG: a("s_memrealtime s[70:71]\ns_memtime s[72:73]")
    if os.environ.get('ETAG'): a("s_memrealtime s[64:65]")
    PROFON[0] = prof
    pf = Prof(a, prof, 70, 0, 12)
    pf.start()
    if prof: a("s_mov_b32 s74, 1\ns_mov_b32 s76, 1")
    a(f"""
    s_cmp_ge_u32 s2, 256
    s_cbranch_scc1 L_end
    s_load_dwordx8 s[44:51], s[0:1], 0
    s_load_dwordx2 s[52:53], s[0:1], {KA_WO}
    s_load_dwordx8 s[56:63], s[0:1], {KA_W1}     ; w1, w2, out, debug
    s_load_dwordx2 s[4:5], s[0:1], {KA_WS}
    v_and_b32 v1, 63, v0                    ; lane
    v_lshrrev_b32 v2, 6, v0
    v_lshlrev_b32 v{L16}, 4, v1
    v_readfirstlane_b32 s66, v2
    s_and_b32 s20, s2, 7
    s_lshr_b32 s21, s2, 3
    s_getreg_b32 s54, hwreg(HW_REG_XCC_ID, 0, 4)
    s_and_b32 s6, s66, 3
    s_lshr_b32 s7, s66, 2
    s_lshl_b32 s3, s20, 5
    s_add_u32 s3, s3, s21
    s_cmp_ge_u32 s21, 28
    s_cbranch_scc1 L_h_start
    """)
    gen_phase_p(a, pf)
    gen_phase_a(a, pf)
    gen_helper_p(a, pf)
    a.label("L_code_end")
    a("s_endpgm")
    return kernel_desc(name, NV)
```
